```python
import torch

def _softmax(x, axis=-1):
    return torch.softmax(x, dim=axis)
def _gelu(x):
    return torch.nn.functional.gelu(x, approximate="tanh")
def _silu(x):
    return torch.nn.functional.silu(x)
def _sigmoid(x):
    return torch.sigmoid(x)
def _layernorm(x, axis=-1, eps=1e-5):
    m = x.mean(dim=axis, keepdim=True)
    v = x.var(dim=axis, keepdim=True, unbiased=False)
    return (x - m) / torch.sqrt(v + eps)
def _scatter_add(tgt, idx, src, axis=0):
    return tgt.clone().index_add_(axis, idx, src)
def _segment_sum(src, seg, n):
    out = torch.zeros((n,) + src.shape[1:], dtype=src.dtype)
    return out.index_add_(0, seg, src)
def _pad(x, pw):
    flat = tuple(v for pair in reversed(pw) for v in pair)
    return torch.nn.functional.pad(x, flat)

kernel_name = 'sequential_preLN__softmax_full_mha__glu_gated_reglu__prompt'

def setup_inputs():

    _w = (lambda a: (lambda t: t.to(torch.bfloat16) if t.is_floating_point() else t)(torch.as_tensor(a)))
    def _A_setup():
        B, S, D = 1, 2048, 576
        return {
            "x": _w((lambda *s: torch.randn(*s, dtype=torch.bfloat16) * 0.05)(B, S, D)),
            "wqkv": _w((lambda *s: torch.randn(*s, dtype=torch.bfloat16) * 0.05)(D, 3 * D)),
            "wo": _w((lambda *s: torch.randn(*s, dtype=torch.bfloat16) * 0.05)(D, D)),
        }
    _A_in = _A_setup()

    def _B_setup():
        B, S, D, F = 1, 2048, 576, 4608
        return {
            "x": _w((lambda *s: torch.randn(*s, dtype=torch.bfloat16) * 0.05)(B, S, D)),
            "W_gate": _w((lambda *s: torch.randn(*s, dtype=torch.bfloat16) * 0.4)(D, F) * (2.0 / D) ** 0.5),
            "W_up": _w((lambda *s: torch.randn(*s, dtype=torch.bfloat16) * 0.4)(D, F) * (2.0 / D) ** 0.5),
            "W_down": _w((lambda *s: torch.randn(*s, dtype=torch.bfloat16) * 0.4)(F, D) * (1.0 / F) ** 0.5),
        }
    _B_in = _B_setup()

    return {
        "A_x": _A_in["x"],
        "A_wqkv": _A_in["wqkv"],
        "A_wo": _A_in["wo"],
        "B_x": _B_in["x"],
        "B_W_gate": _B_in["W_gate"],
        "B_W_up": _B_in["W_up"],
        "B_W_down": _B_in["W_down"],
    }

def reference(A_x, A_wqkv, A_wo, B_x, B_W_gate, B_W_up, B_W_down):
    def _A_ref(x, wqkv, wo):
        B, S, D = x.shape
        H = 32; Dh = D // H
        qkv = (lambda x, *d: x.permute(*d))((x @ wqkv).reshape(B, S, 3, H, Dh), 2, 0, 3, 1, 4)
        q, k, v = qkv[0], qkv[1], qkv[2]
        scale = Dh ** -0.5
        scores = torch.einsum("bhqd,bhkd->bhqk", q, k) * scale
        p = _softmax(scores, axis=-1)
        o = torch.einsum("bhqk,bhkd->bhqd", p, v)
        return (lambda x, *d: x.permute(*d))(o, 0, 2, 1, 3).reshape(B, S, D) @ wo

    def _B_ref(x, W_gate, W_up, W_down):
        gate = torch.einsum("bsd,df->bsf", x, W_gate)
        up = torch.einsum("bsd,df->bsf", x, W_up)
        gate = gate * (lambda x, dt: x.to(dt))(gate > 0, gate.dtype)
        h = gate * up
        return torch.einsum("bsf,fd->bsd", h, W_down)

    x = A_x
    h = x + _A_ref(_layernorm(x, axis=-1), A_wqkv, A_wo)
    h2 = h + _B_ref(_layernorm(h, axis=-1), B_W_gate, B_W_up, B_W_down)
    return h2
```

```python
import re

TRANS = ("v_exp_", "v_log_", "v_rcp_", "v_rsq_", "v_sqrt_", "v_sin_", "v_cos_")
def passes(op):
    if "32x32x4" in op: return 16
    if "32x32x16" in op or "32x32x8" in op: return 8
    if "16x16x32" in op or "16x16x16" in op: return 4
    raise ValueError(op)
IDX = {2: 0, 4: 1, 8: 2, 16: 3}
T_D_OTHER = [5, 8, 12, 20]
T_D_COVER = [4, 6, 10, 18]
T_C_WAR = [1, 3, 7, 15]

_reg = re.compile(r"^(-|abs\()?([vas])(\d+)\)?$")
_rng = re.compile(r"^(-)?([vas])\[(\d+):(\d+)\]$")
def regs_of(tok):
    tok = tok.strip()
    m = _reg.match(tok)
    if m: return [(m.group(2), int(m.group(3)))]
    m = _rng.match(tok)
    if m: return [(m.group(2), i) for i in range(int(m.group(3)), int(m.group(4)) + 1)]
    if tok == "vcc": return [("s", 106), ("s", 107)]
    if tok == "vcc_lo": return [("s", 106)]
    if tok == "vcc_hi": return [("s", 107)]
    if tok == "exec": return [("s", 126), ("s", 127)]
    if tok == "m0": return [("s", 124)]
    return []

class Ins:
    def __init__(self, text):
        self.text = text
        t = text.split(";")[0].strip()
        self.label = t.endswith(":")
        self.directive = t.startswith(".") and not self.label
        self.op = ""
        self.w = set(); self.r = set(); self.kind = "none"
        self.srcc = []; self.ab = set(); self.d = []
        self.data = set()
        if self.label or self.directive or not t: return
        parts = t.split(None, 1)
        op = self.op = parts[0]
        rest = parts[1] if len(parts) > 1 else ""
        ops = [o.strip() for o in re.split(r",(?![^\[]*\])", rest)]
        mods = ""
        if ops:
            sp = ops[-1].split(None, 1)
            if len(sp) > 1: ops[-1], mods = sp[0], sp[1]
        self.mods = mods
        R = lambda i: regs_of(ops[i]) if i < len(ops) else []
        allr = lambda a: [x for i in range(a, len(ops)) for x in R(i)]
        if op.startswith("v_mfma"):
            self.kind = "mfma"; self.d = R(0); self.w = set(R(0)); self.ab = set(R(1) + R(2)); self.srcc = R(3)
            self.r = self.ab | set(self.srcc); self.p = passes(op)
        elif op.startswith("v_cmp"):
            self.kind = "valu"; self.w = set(R(0)); self.r = set(allr(1))
            if op.startswith("v_cmpx"): self.w |= set(regs_of("exec"))
        elif op.startswith("v_readfirstlane") or op.startswith("v_readlane"):
            self.kind = "valu"; self.w = set(R(0)); self.r = set(allr(1))
        elif op.startswith("v_permlane") or op.startswith("v_swap"):
            self.kind = "valu"; self.w = set(R(0) + R(1)); self.r = set(R(0) + R(1))
        elif op.startswith("v_"):
            self.kind = "valu"; self.w = set(R(0)); self.r = set(allr(1))
            if "_co_" in op: self.w |= set(R(1)); self.r = set(allr(2))
            if op.startswith(("v_fmac", "v_dot2c", "v_pk_fmac")) or "UNUSED_PRESERVE" in mods or "_dpp" in op: self.r |= set(R(0))
            if op.startswith("v_cndmask") and len(ops) == 3: self.r |= set(regs_of("vcc"))
        elif op.startswith("ds_"):
            self.kind = "ds"
            if op.startswith(("ds_read", "ds_bpermute", "ds_permute", "ds_swizzle")): self.w = set(R(0)); self.r = set(allr(1))
            else: self.r = set(allr(0))
        elif op.startswith(("buffer_", "global_")):
            self.kind = "vmem"
            lds = (" lds" in " " + mods) or "_lds_" in op
            self.lds = lds
            if "load" in op and not lds: self.w = set(R(0)); self.r = set(allr(1))
            elif "atomic" in op and "sc0" in mods and op.startswith("global"): self.w = set(R(0)); self.r = set(allr(1))
            else:
                self.r = set(allr(0))
                if "atomic" in op and "sc0" in mods: self.w = set(R(0))
                if "store" in op and ("x3" in op or "x4" in op):
                    self.data = set(R(0)) if op.startswith("buffer") else set(R(1))
            if lds: self.r |= {("s", 124)}
        elif op.startswith("s_"):
            self.kind = "salu"
            if op.startswith(("s_cmp", "s_cbranch", "s_branch", "s_waitcnt", "s_barrier", "s_nop", "s_endpgm", "s_sleep", "s_setprio")):
                self.r = set(allr(0))
            else:
                self.w = set(R(0)); self.r = set(allr(1))
                if "saveexec" in op: self.w |= set(regs_of("exec"))
        else:
            raise ValueError("unknown op: " + text)
    def states(self):
        if self.kind == "none": return 0
        if self.op == "s_nop": return int(self.text.split()[1], 0) + 1
        return 1

def need(p, c):
    n = 0
    vw = {x for x in p.w if x[0] != "s"}
    sw = {x for x in p.w if x[0] == "s"}
    if p.kind == "mfma":
        i = IDX[p.p]
        if c.kind == "mfma":
            if vw & c.ab: n = max(n, T_D_OTHER[i])
            if vw & set(c.srcc):
                if not (c.srcc == p.d and c.p == p.p): n = max(n, T_D_COVER[i])
            if vw & c.w and not (vw & set(c.srcc)): n = max(n, T_D_COVER[i])
        elif c.kind in ("valu", "ds", "vmem"):
            if vw & (c.r | c.w): n = max(n, T_D_OTHER[i])
            if c.kind == "valu" and set(p.srcc) & c.w: n = max(n, T_C_WAR[i])
            if c.kind in ("ds", "vmem") and set(p.srcc) & c.w: n = max(n, T_C_WAR[i])
    elif p.kind == "valu":
        isdot = p.op.startswith("v_dot")
        if c.kind == "mfma":
            if vw & c.r: n = max(n, 3 if isdot else 2)
            if ("s", 126) in sw: n = max(n, 4)
        if c.kind == "valu":
            if p.op.startswith(TRANS) and vw & c.r and not c.op.startswith(TRANS): n = max(n, 1)
            if c.op.startswith("v_permlane") and vw & c.r: n = max(n, 2)
            if c.op.startswith(("v_readlane", "v_readfirstlane")) and vw & c.r: n = max(n, 1)
            if "_dpp" in c.op and vw & c.r: n = max(n, 2)
            if sw & c.r:
                n = max(n, 4 if c.op.startswith(("v_readlane", "v_writelane")) else 2)
            if ("s", 126) in sw:
                if "_dpp" in c.op: n = max(n, 5)
                if c.op.startswith(("v_readlane", "v_readfirstlane", "v_writelane", "v_permlane")): n = max(n, 4)
            if ("sdwa" in p.op or "op_sel" in p.mods) and not p.op.startswith("v_pk") and vw & (c.r | c.w): n = max(n, 1)
            if isdot:
                if c.op != p.op and vw & (c.r | c.w): n = max(n, 3)
                if c.op == p.op:
                    toks = [t.strip() for t in re.split(r",(?![^\[]*\])", c.text.split(None, 1)[1])]
                    ab = set(regs_of(toks[1]) + regs_of(toks[2].split()[0]))
                    if vw & ab: n = max(n, 3)
        if c.kind in ("vmem", "ds") and isdot and vw & c.r: n = max(n, 3)
        if c.kind == "vmem" and sw & c.r: n = max(n, 5)
        if c.kind == "salu" and sw & c.r: n = max(n, 1)
    elif p.kind == "vmem":
        if p.data and c.kind == "valu" and p.data & c.w: n = max(n, 2)
        elif p.data and p.data & c.w: n = max(n, 1)
    elif p.kind == "salu":
        if ("s", 124) in sw and c.kind == "vmem" and getattr(c, "lds", False): n = max(n, 1)
    return n

class Asm:
    def __init__(self):
        self.lines = []
    def __call__(self, text):
        for l in text.split("\n"):
            l = l.strip()
            if not l: continue
            m = re.match(r"s_cselect_b32 (s\d+), (\d\w*), (\d\w*)$", l)
            if m and int(m.group(2), 0) > 64 and int(m.group(3), 0) > 64:
                self.lines.append(f"s_mov_b32 {m.group(1)}, {m.group(3)}")
                self.lines.append(f"s_cselect_b32 {m.group(1)}, {m.group(2)}, {m.group(1)}")
                continue
            self.lines.append(l)
    def finish(self):
        out = []
        def required(hist, c):
            pad = 0; dist = 0
            for p in reversed(hist):
                if dist > 24: break
                n = need(p, c)
                if n > dist: pad = max(pad, n - dist)
                dist += p.states()
            return pad
        npad = 0
        for l in self.lines:
            c = Ins(l)
            if c.kind != "none":
                pad = required(out[-40:], c)
                while pad > 0:
                    k = min(pad, 16)
                    out.append(Ins(f"s_nop {k-1}")); npad += 1
                    pad -= k
            out.append(c)
        lab = {c.text[:-1]: i for i, c in enumerate(out) if c.label}
        for i, c in enumerate(out):
            if c.op.startswith(("s_cbranch", "s_branch")):
                tgt = lab[c.text.split()[1]]
                hist = out[max(0, i - 40): i + 1]
                for c2 in out[tgt: tgt + 30]:
                    if c2.kind != "none":
                        pad = required(hist, c2)
                        if pad: raise RuntimeError(f"hazard across branch '{c.text}' at '{c2.text}' needs {pad} more")
                    hist = hist + [c2]
                    if c2.op in ("s_branch", "s_endpgm"): break
        self.npad = npad
        return "\n".join(("" if (c.label or c.directive) else "    ") + c.text for c in out) + "\n"

def v(a, n=1): return f"v{a}" if n == 1 else f"v[{a}:{a+n-1}]"
def a_(a, n=1): return f"a{a}" if n == 1 else f"a[{a}:{a+n-1}]"
def s(a, n=1): return f"s{a}" if n == 1 else f"s[{a}:{a+n-1}]"

def kernel_head(name):
    return f".text\n.globl {name}\n.p2align 8\n.type {name},@function\n{name}:\n"
def kernel_desc(name, nvgpr, nagpr=0, nsgpr=96):
    acc = (nvgpr + 3) // 4 * 4
    tot = acc + nagpr if nagpr else nvgpr
    return f""".section .rodata,"a"
.p2align 6
.amdhsa_kernel {name}
  .amdhsa_next_free_vgpr {tot}
  .amdhsa_next_free_sgpr {nsgpr}
  .amdhsa_accum_offset {acc}
  .amdhsa_group_segment_fixed_size 0
  .amdhsa_kernarg_size 80
  .amdhsa_user_sgpr_count 2
  .amdhsa_user_sgpr_kernarg_segment_ptr 1
  .amdhsa_system_sgpr_workgroup_id_x 1
.end_amdhsa_kernel
"""
```

```python
from asmlib import *
from layout import *

def srd(A, d, lo, hi, size):
    A(f"s_mov_b32 s{d}, s{lo}\n s_and_b32 s{d+1}, s{hi}, 0xffff\n s_mov_b32 s{d+2}, {size}\n s_mov_b32 s{d+3}, 0x20000")

def gen_k1(name):
    A = Asm()
    X = 32; ACC = 176
    VM = 4; VS = 8; VD = 12
    NM = 21; VA = 22
    T = 24
    SX, SW, SO = 12, 16, 20
    A(f"""
    s_cmp_ge_u32 s2, 192
    s_cbranch_scc1 {name}_end
    s_load_dwordx4 s[4:7], s[0:1], 0
    s_load_dwordx2 s[8:9], s[0:1], 72
    v_lshrrev_b32 v1, 6, v0
    v_and_b32 v2, 63, v0
    v_readfirstlane_b32 s24, v1
    s_and_b32 s25, s2, 7
    s_lshl_b32 s25, s25, 2
    s_lshr_b32 s26, s2, 3
    s_and_b32 s26, s26, 3
    s_add_u32 s25, s25, s26
    s_lshr_b32 s26, s2, 5
    s_and_b32 s27, s24, 1
    s_lshr_b32 s28, s24, 1
    s_lshl_b32 s29, s25, 1
    s_add_u32 s29, s29, s27
    """)
    A(f"""
    v_and_b32 v1, 31, v2
    s_lshl_b32 s30, s29, 5
    v_add_u32 v3, s30, v1
    v_mul_u32_u24 v3, 1152, v3
    v_lshrrev_b32 v{T}, 5, v2
    v_lshl_add_u32 v3, v{T}, 4, v3
    s_waitcnt lgkmcnt(0)
    """)
    srd(A, SX, 4, 5, 2359296)
    srd(A, SW, 6, 7, 1990656)
    srd(A, SO, 8, 9, WS_USED)
    for st in range(36):
        A(f"buffer_load_dwordx4 {v(X+4*st,4)}, v3, {s(SX,4)}, 0 offen offset:{32*st}")
    A(f"""
    s_mul_i32 s30, s24, {16*3456}
    s_mul_i32 s31, s26, 576
    s_add_u32 s30, s30, s31
    s_mul_i32 s32, s24, 9216
    """)
    for i in range(9):
        A(f"""
        v_add_u32 v{T}, {64*i}, v2
        v_mul_u32_u24 v{T+1}, 1821, v{T}
        v_lshrrev_b32 v{T+1}, 16, v{T+1}
        v_mul_u32_u24 v{T+2}, 36, v{T+1}
        v_sub_u32 v{T}, v{T}, v{T+2}
        v_mul_u32_u24 v{T+1}, 3456, v{T+1}
        v_lshl_add_u32 v{T}, v{T}, 4, v{T+1}
        v_add_u32 v{VD+i}, s30, v{T}
        """)
    def dma(stage):
        out = []
        out.append(f"s_mov_b32 s33, {stage*64*3456}")
        for i in range(9):
            out.append(f"s_add_u32 m0, s32, {(stage%4)*36864 + i*1024}\n buffer_load_dwordx4 v{VD+i}, {s(SW,4)}, s33 offen lds")
        return out
    for st in range(3):
        for l in dma(st): A(l)
    A(f"""
    v_and_b32 v{T}, 15, v2
    v_lshrrev_b32 v{T+1}, 2, v{T}
    v_lshrrev_b32 v{T+2}, 5, v2
    v_lshl_add_u32 v{T+1}, v{T+2}, 3, v{T+1}
    v_mul_u32_u24 v{T+1}, 576, v{T+1}
    v_and_b32 v{T}, 3, v{T}
    v_bfe_u32 v{T+2}, v2, 4, 1
    """)
    A(f"""
    s_cmp_ge_u32 s26, 4
    s_cselect_b32 s34, 32, 288
    s_cselect_b32 s35, 256, 144
    s_cselect_b32 s36, 8, 72
    s_cselect_b32 s37, 512, 32
    s_mul_i32 s35, s35, s28
    v_mul_lo_u32 v{T+3}, v{T+2}, s34
    v_add_u32 v{T+3}, v{T+3}, v{T+1}
    v_lshl_add_u32 v{VM}, v{T}, 3, v{T+3}
    v_add_u32 v{VM}, s35, v{VM}
    v_mul_lo_u32 v{T+4}, v{T}, s36
    v_add_u32 v{VS}, v{T+3}, v{T+4}
    v_add_u32 v{VS}, s37, v{VS}
    """)
    for k in range(1, 4):
        A(f"v_add_u32 v{VM+k}, {36864*k}, v{VM}\n v_add_u32 v{VS+k}, {36864*k}, v{VS}")
    A(f"s_mov_b32 s38, 0x3f803f80\n s_mov_b32 s39, 0x00003f80\n s_mov_b32 s40, 0x3f800000")
    for k in range(4): A(f"v_mov_b32 v{T+k}, 0")
    A(f"v_mov_b32 v{VA}, 0\n v_mov_b32 v{VA+1}, 0")
    for g in range(9):
        A(f"s_waitcnt vmcnt({27 + 36 - 4*(g+1)})")
        for r in range(16):
            A(f"v_dot2c_f32_bf16 v{T+(r&3)}, s38, v{X+16*g+r}")
    A(f"""
    v_add_f32 v{T}, v{T}, v{T+1}
    v_add_f32 v{T+2}, v{T+2}, v{T+3}
    v_add_f32 v{T}, v{T}, v{T+2}
    v_mov_b32 v{T+1}, v{T}
    v_permlane32_swap_b32 v{T}, v{T+1}
    v_add_f32 v{T}, v{T}, v{T+1}
    v_mul_f32 v{NM}, {hex(f2u(-1.0/576))}, v{T}
    """)
    def center(st):
        o = []
        for r in range(4):
            o.append(f"v_dot2_f32_bf16 v{T+2*r}, v{X+4*st+r}, s39, v{NM}")
            o.append(f"v_dot2_f32_bf16 v{T+2*r+1}, v{X+4*st+r}, s40, v{NM}")
        for r in range(4):
            o.append(f"v_cvt_pk_bf16_f32 v{X+4*st+r}, v{T+2*r}, v{T+2*r+1}")
        for r in range(4):
            o.append(f"v_dot2c_f32_bf16 v{VA+(r&1)}, v{X+4*st+r}, v{X+4*st+r}")
        return o
    for l in center(0): A(l)
    A("s_waitcnt vmcnt(18)\n s_barrier")
    A(f"s_cmp_ge_u32 s26, 4\n s_cbranch_scc1 {name}_vmain")
    def mainloop(isv):
        def reads(st, t):
            slot = (st // 4) % 4
            base = (st % 4) * 16 * 576
            if t < 4:
                ad = VM + slot; off = base + (64*t if isv else 72*(t >> 1) + 40*(t & 1))
            else:
                ad = VS + slot; off = base
            return [f"ds_read_b64_tr_b16 {a_(4*t,2)}, v{ad} offset:{off}",
                    f"ds_read_b64_tr_b16 {a_(4*t+2,2)}, v{ad} offset:{off+4*576}"]
        for t in range(5):
            for l in reads(0, t): A(l)
        for st in range(36):
            fill = center(st + 1) if st < 35 else []
            dm = []
            for t in range(5):
                if st < 35: A("s_waitcnt lgkmcnt(8)")
                else: A(f"s_waitcnt lgkmcnt({8-2*t})")
                c = v(ACC+16*t, 16) if st else "0"
                if isv: A(f"v_mfma_f32_32x32x16_bf16 {v(ACC+16*t,16)}, {v(X+4*st,4)}, {a_(4*t,4)}, {c}")
                else:   A(f"v_mfma_f32_32x32x16_bf16 {v(ACC+16*t,16)}, {a_(4*t,4)}, {v(X+4*st,4)}, {c}")
                if t == 0 and st % 4 == 3 and st < 35:
                    stage = st // 4
                    A(f"s_waitcnt vmcnt({9 if stage < 7 else 0})\n s_barrier")
                    if stage + 3 <= 8: dm = dma(stage + 3)
                if st < 35:
                    for l in reads(st + 1, t): A(l)
                n = [4, 4, 4, 4, 0][t]
                for l in fill[:n]: A(l)
                fill = fill[n:]
                k = 2 if t < 4 else len(dm)
                for l in dm[:k]: A(l)
                dm = dm[k:]
    def rstd():
        A(f"""
        v_add_f32 v{T}, v{VA}, v{VA+1}
        v_mov_b32 v{T+1}, v{T}
        v_permlane32_swap_b32 v{T}, v{T+1}
        v_add_f32 v{T}, v{T}, v{T+1}
        v_mov_b32 v{T+1}, {hex(f2u(1e-5))}
        v_fmac_f32 v{T+1}, {hex(f2u(1.0/576))}, v{T}
        v_rsq_f32 v{NM}, v{T+1}
        """)
    mainloop(False)
    rstd()
    A(f"""
    s_cmp_ge_u32 s26, 2
    s_cselect_b32 s41, 0x3f800000, {hex(f2u(QSCALE))}
    s_cselect_b32 s42, {KV_HEAD}, 65536
    s_cselect_b32 s43, {KV_HEAD}, 8192
    s_cselect_b32 s50, 4, 2
    s_lshr_b32 s44, s29, 3
    s_mul_i32 s44, s44, {KV_CHUNK}
    s_add_u32 s44, s44, {KV_OFF}
    s_and_b32 s45, s29, 7
    s_lshl_b32 s45, s45, 10
    s_add_u32 s45, s45, s44
    s_and_b32 s46, s29, 1
    s_lshl_b32 s46, s46, 9
    s_add_u32 s44, s44, s46
    s_lshr_b32 s46, s29, 1
    s_and_b32 s46, s46, 3
    s_lshl_b32 s46, s46, 2
    s_add_u32 s44, s44, s46
    s_add_u32 s44, s44, 8192
    s_lshl_b32 s46, s29, 10
    s_add_u32 s46, s46, {QF_OFF}
    s_lshl_b32 s47, s29, 7
    s_add_u32 s47, s47, {QT_OFF}
    s_cmp_ge_u32 s26, 2
    s_cselect_b32 s45, s45, s46
    s_cselect_b32 s44, s44, s47
    s_and_b32 s46, s26, 1
    s_lshl_b32 s46, s46, 4
    s_mul_i32 s47, s46, s43
    s_add_u32 s44, s44, s47
    s_lshl_b32 s47, s28, 2
    s_add_u32 s46, s46, s47
    s_mul_i32 s47, s46, s42
    s_add_u32 s45, s45, s47
    s_lshl_b32 s48, s42, 3
    v_mul_f32 v{NM}, s41, v{NM}
    v_lshlrev_b32 v3, 4, v2
    """)
    for t in range(4):
        for half in range(2):
            b = ACC + 16*t + 8*half
            tmp = X + (2*t + half) * 4
            for r in range(8): A(f"v_mul_f32 v{b+r}, v{b+r}, v{NM}")
            for r in range(4): A(f"v_cvt_pk_bf16_f32 v{tmp+r}, v{b+2*r}, v{b+2*r+1}")
            if half == 0:
                A(f"buffer_store_dwordx4 {v(tmp,4)}, v3, {s(SO,4)}, s45 offen")
                A("s_add_u32 s49, s45, s48")
            else:
                A(f"buffer_store_dwordx4 {v(tmp,4)}, v3, {s(SO,4)}, s49 offen")
                A("s_add_u32 s45, s45, s42")
    A(f"s_cmp_lg_u32 s28, 0\n s_cbranch_scc1 {name}_end")
    A(f"""
    v_and_b32 v{T}, 31, v2
    v_lshlrev_b32 v{T}, s50, v{T}
    v_lshrrev_b32 v{T+1}, 5, v2
    s_lshl_b32 s46, s43, 1
    v_mul_lo_u32 v{T+1}, v{T+1}, s46
    v_add_u32 v3, v{T}, v{T+1}
    s_mul_i32 s47, s43, 3
    """)
    b = ACC + 64
    for r in range(16): A(f"v_mul_f32 v{b+r}, v{b+r}, v{NM}")
    for r in range(8): A(f"v_cvt_pk_bf16_f32 v{X+64+r}, v{b+2*r}, v{b+2*r+1}")
    for a in range(4):
        A(f"buffer_store_dword v{X+64+2*a}, v3, {s(SO,4)}, s44 offen\n s_add_u32 s44, s44, s43")
        A(f"buffer_store_dword v{X+64+2*a+1}, v3, {s(SO,4)}, s44 offen\n s_add_u32 s44, s44, s47")
    A("s_endpgm")
    A(f"{name}_vmain:")
    mainloop(True)
    rstd()
    RS = X
    A(f"""
    s_lshl_b32 s41, s24, 7
    s_add_u32 s41, s41, 147456
    v_and_b32 v{T}, 31, v2
    v_lshl_add_u32 v{T}, v{T}, 2, s41
    ds_write_b32 v{T}, v{NM}
    v_lshrrev_b32 v{T+1}, 5, v2
    v_lshl_add_u32 v{T+2}, v{T+1}, 4, s41
    s_waitcnt lgkmcnt(0)
    ds_read_b128 {v(RS,4)}, v{T+2}
    ds_read_b128 {v(RS+4,4)}, v{T+2} offset:32
    ds_read_b128 {v(RS+8,4)}, v{T+2} offset:64
    ds_read_b128 {v(RS+12,4)}, v{T+2} offset:96
    s_lshr_b32 s44, s29, 3
    s_mul_i32 s44, s44, {KV_CHUNK}
    s_and_b32 s45, s29, 7
    s_mul_i32 s45, s45, {2*VFRAG}
    s_add_u32 s44, s44, s45
    s_add_u32 s44, s44, {KV_OFF + 9216}
    s_sub_u32 s46, s26, 4
    s_mul_i32 s45, s46, {16*KV_HEAD}
    s_add_u32 s44, s44, s45
    s_mov_b32 s47, {KV_HEAD}
    s_lshl_b32 s48, s28, 7
    v_mul_u32_u24 v{T+1}, {19*16}, v{T+1}
    v_and_b32 v{T}, 31, v2
    """)
    A(f"""
    v_lshrrev_b32 v{T+2}, 2, v2
    v_mul_lo_u32 v{T+2}, v{T+2}, s47
    v_and_b32 v{T+3}, 3, v2
    v_mul_u32_u24 v{T+3}, {19*16}, v{T+3}
    v_add_u32 v{T+2}, v{T+2}, v{T+3}
    v_mov_b32 v{X+16}, s38
    v_mov_b32 v{X+17}, s38
    v_mov_b32 v{X+18}, s38
    v_mov_b32 v{X+19}, s38
    buffer_store_dwordx4 {v(X+16,4)}, v{T+2}, {s(SO,4)}, s44 offen offset:{18*16}
    s_waitcnt lgkmcnt(0)
    """)
    for t in range(5):
        if t == 4: A(f"s_cmp_lg_u32 s28, 0\n s_cbranch_scc1 {name}_end")
        ad = VD + t
        if t < 4: A(f"v_add_u32 v{T+2}, s48, v{T}\n v_add_u32 v{T+2}, {32*t}, v{T+2}")
        else: A(f"v_add_u32 v{T+2}, 256, v{T}")
        A(f"""
        v_mul_u32_u24 v{T+3}, 3641, v{T+2}
        v_lshrrev_b32 v{T+3}, 16, v{T+3}
        v_mul_u32_u24 v{T+4}, 18, v{T+3}
        v_sub_u32 v{T+2}, v{T+2}, v{T+4}
        v_mul_lo_u32 v{T+3}, v{T+3}, s47
        v_lshl_add_u32 v{T+2}, v{T+2}, 4, v{T+1}
        v_add_u32 v{ad}, v{T+2}, v{T+3}
        """)
        for half in range(2):
            b = ACC + 16*t + 8*half
            tmp = X + 32 + (2*t + half) * 4
            for r in range(8): A(f"v_mul_f32 v{b+r}, v{b+r}, v{RS+8*half+r}")
            for r in range(4): A(f"v_cvt_pk_bf16_f32 v{tmp+r}, v{b+2*r}, v{b+2*r+1}")
            A(f"buffer_store_dwordx4 {v(tmp,4)}, v{ad}, {s(SO,4)}, s44 offen offset:{VFRAG*half}")
    A(f"{name}_end:\n s_endpgm")
    body = A.finish()
    launch = (name, 192, 256, 147456 + 512)
    return launch, kernel_head(name) + body, kernel_desc(name, 256, 24, 64)
```

```python
from asmlib import *
from layout import *
from k1 import srd

def gen_k2(name, force_fallback=False):
    A = Asm()
    Q = 4; QT = 8; KA = 12; VA = 13; WA = 14; WB = 15
    NEGM = 16; O = 32; S = [48, 80]; P = 112; KF = 128; KT = [136, 140]; VF = 144
    RAW = 160; T = 192
    SKV, SWS, SSRC = 12, 16, 20
    A(f"""
    s_cmp_ge_u32 s2, 256
    s_cbranch_scc1 {name}_end
    s_load_dwordx2 s[8:9], s[0:1], 72
    s_load_dwordx2 s[4:5], s[0:1], 16
    s_load_dwordx4 s[52:55], s[0:1], 32
    s_load_dwordx2 s[56:57], s[0:1], 48
    v_lshrrev_b32 v1, 6, v0
    v_and_b32 v2, 63, v0
    v_readfirstlane_b32 s24, v1
    s_and_b32 s25, s2, 7
    s_lshl_b32 s25, s25, 2
    s_lshr_b32 s26, s2, 3
    s_and_b32 s26, s26, 3
    s_add_u32 s25, s25, s26
    s_lshr_b32 s26, s2, 5
    s_lshl_b32 s26, s26, 3
    s_add_u32 s26, s26, s24
    v_lshlrev_b32 v3, 4, v2
    v_and_b32 v1, 31, v2
    v_lshlrev_b32 v{T}, 2, v1
    s_lshl_b32 s27, s25, 16
    s_lshl_b32 s28, s26, 10
    s_add_u32 s27, s27, s28
    s_add_u32 s27, s27, {QF_OFF}
    s_lshl_b32 s28, s25, 13
    s_lshl_b32 s29, s26, 7
    s_add_u32 s28, s28, s29
    s_add_u32 s28, s28, {QT_OFF}
    s_mul_i32 s29, s25, {KV_HEAD}
    s_add_u32 s29, s29, {KV_OFF}
    s_waitcnt lgkmcnt(0)
    """)
    srd(A, SWS, 8, 9, WS_USED)
    A(f"""
    buffer_load_dwordx4 {v(Q,4)}, v3, {s(SWS,4)}, s27 offen
    buffer_load_dword v{QT}, v{T}, {s(SWS,4)}, s28 offen
    s_add_u32 s{SKV}, s8, s29
    s_addc_u32 s{SKV+1}, s9, 0
    s_and_b32 s{SKV+1}, s{SKV+1}, 0xffff
    s_mov_b32 s{SKV+2}, {KV_HEAD}
    s_mov_b32 s{SKV+3}, 0x20000
    s_lshl_b32 s30, s24, 10
    """)
    for j in range(19):
        A(f"s_mov_b32 m0, s30\n buffer_load_dwordx4 v3, {s(SKV,4)}, s30 offen lds\n s_add_u32 s30, s30, 8192")
    A(f"""
    s_lshl_b32 s31, s2, 3
    s_add_u32 s31, s31, s24
    s_mov_b32 s58, 0
    s_cmp_lt_u32 s31, 1296
    s_cbranch_scc0 {name}_w1
    s_cmp_ge_u32 s31, 648
    s_cselect_b32 s{SSRC}, s54, s52
    s_cselect_b32 s{SSRC+1}, s55, s53
    s_cselect_b32 s32, 648, 0
    s_cselect_b32 s33, 128, 0
    s_mov_b32 s{SSRC+2}, 5308416
    s_sub_u32 s31, s31, s32
    s_mul_i32 s32, s31, 7282
    s_lshr_b32 s32, s32, 16
    s_mul_i32 s34, s32, 9
    s_sub_u32 s31, s31, s34
    s_lshl_b32 s31, s31, 6
    v_add_u32 v{T}, s31, v2
    s_mul_i32 s34, s32, {8*9216}
    v_lshl_add_u32 v{T+1}, v{T}, 4, s34
    v_lshrrev_b32 v{T+2}, 1, v{T}
    v_mul_u32_u24 v{T+3}, 7282, v{T+2}
    v_lshrrev_b32 v{T+3}, 16, v{T+3}
    v_mul_u32_u24 v{T+4}, 9, v{T+3}
    v_sub_u32 v{T+2}, v{T+2}, v{T+4}
    s_lshr_b32 s34, s32, 1
    s_mul_i32 s35, s34, 3
    v_add_u32 v{T+4}, s35, v{T+2}
    v_mul_u32_u24 v{T+5}, 36, v{T+2}
    v_add_u32 v{T+5}, s34, v{T+5}
    v_cmp_gt_u32 vcc, 3, v{T+2}
    v_cndmask_b32 v{T+4}, v{T+5}, v{T+4}, vcc
    v_mul_u32_u24 v{T+3}, 324, v{T+3}
    v_add_u32 v{T+4}, v{T+4}, v{T+3}
    s_and_b32 s34, s32, 1
    s_lshl_b32 s34, s34, 9
    s_add_u32 s34, s34, s33
    s_add_u32 s34, s34, {WGU_OFF}
    v_lshl_add_u32 v{WA}, v{T+4}, 10, s34
    v_and_b32 v{T+2}, 1, v{T}
    v_lshl_add_u32 v{WA}, v{T+2}, 8, v{WA}
    v_add_u32 v{WB}, 64, v{WA}
    """)
    for j in range(8): A(f"s_mov_b32 s{40+j}, {j*9216}")
    A(f"s_branch {name}_wload")
    A(f"""
    {name}_w1:
    s_cmp_ge_u32 s31, 2025
    s_cselect_b32 s58, 1, 0
    s_cselect_b32 s31, 2024, s31
    s_cmp_ge_u32 s31, 1944
    s_cselect_b32 s{SSRC}, s4, s56
    s_cselect_b32 s{SSRC+1}, s5, s57
    s_cselect_b32 s{SSRC+2}, 663552, 5308416
    s_cselect_b32 s32, 1944, 1296
    s_sub_u32 s33, s31, s32
    s_lshl_b32 s33, s33, 6
    v_add_u32 v{T}, s33, v2
    v_lshrrev_b32 v{T+1}, 3, v{T}
    v_mul_u32_u24 v{T+1}, 7282, v{T+1}
    v_lshrrev_b32 v{T+1}, 16, v{T+1}
    v_mul_u32_u24 v{T+2}, 72, v{T+1}
    v_sub_u32 v{T}, v{T}, v{T+2}
    """)
    for j in range(8): A(f"s_mov_b32 s{40+j}, {(8*(j>>2)+(j&3))*1152}")
    A(f"""
    s_cmp_ge_u32 s31, 1944
    s_cbranch_scc1 {name}_w2
    v_lshrrev_b32 v{T+2}, 1, v{T+1}
    v_lshlrev_b32 v{T+2}, 4, v{T+2}
    v_and_b32 v{T+3}, 1, v{T+1}
    v_lshl_add_u32 v{T+2}, v{T+3}, 2, v{T+2}
    v_mul_u32_u24 v{T+2}, 1152, v{T+2}
    v_lshl_add_u32 v{T+5}, v{T}, 4, v{T+2}
    v_mul_u32_u24 v{T+2}, 3641, v{T}
    v_lshrrev_b32 v{T+2}, 16, v{T+2}
    v_mul_u32_u24 v{T+3}, 18, v{T+2}
    v_sub_u32 v{T}, v{T}, v{T+3}
    v_mul_u32_u24 v{T+2}, 144, v{T+2}
    v_lshrrev_b32 v{T+3}, 2, v{T+1}
    v_add_u32 v{T+2}, v{T+2}, v{T+3}
    v_mul_u32_u24 v{T+2}, 9, v{T+2}
    v_lshrrev_b32 v{T+3}, 2, v{T}
    v_lshl_add_u32 v{T+2}, v{T+3}, 1, v{T+2}
    v_lshlrev_b32 v{T+2}, 10, v{T+2}
    v_and_b32 v{T+3}, 3, v{T+1}
    v_lshl_add_u32 v{T+2}, v{T+3}, 8, v{T+2}
    v_and_b32 v{T+3}, 3, v{T}
    v_cmp_gt_u32 vcc, 16, v{T}
    v_mov_b32 v{T+4}, 7
    v_cndmask_b32 v{T+4}, v{T+4}, 6, vcc
    v_lshlrev_b32 v{T+3}, v{T+4}, v{T+3}
    v_add_u32 v{T+2}, v{T+2}, v{T+3}
    v_add_u32 v{WA}, {WD_OFF}, v{T+2}
    v_mov_b32 v{T+4}, 64
    v_mov_b32 v{T+3}, 1024
    v_cndmask_b32 v{T+4}, v{T+4}, v{T+3}, vcc
    v_add_u32 v{WB}, v{WA}, v{T+4}
    v_mov_b32 v{T+1}, v{T+5}
    s_branch {name}_wload
    """)
    A(f"""
    {name}_w2:
    v_lshrrev_b32 v{T+2}, 1, v{T+1}
    v_and_b32 v{T+3}, 1, v{T+1}
    v_lshrrev_b32 v{T+4}, 3, v{T}
    v_mul_u32_u24 v{T+4}, 36, v{T+4}
    v_add_u32 v{T+4}, v{T+4}, v{T+2}
    v_bfe_u32 v{T+5}, v{T}, 2, 1
    v_lshl_add_u32 v{T+4}, v{T+4}, 1, v{T+5}
    v_lshlrev_b32 v{T+4}, 10, v{T+4}
    v_lshl_add_u32 v{T+4}, v{T+3}, 9, v{T+4}
    v_bfe_u32 v{T+5}, v{T}, 1, 1
    v_lshl_add_u32 v{T+4}, v{T+5}, 8, v{T+4}
    v_and_b32 v{T+5}, 1, v{T}
    v_lshl_add_u32 v{T+4}, v{T+5}, 6, v{T+4}
    v_add_u32 v{WA}, {WOF_OFF}, v{T+4}
    v_add_u32 v{WB}, 128, v{WA}
    v_mul_u32_u24 v{T+4}, 18, v{T+2}
    v_lshl_add_u32 v{T+4}, v{T+3}, 2, v{T+4}
    s_cmp_ge_u32 s31, 2016
    s_cbranch_scc0 {name}_w3
    v_subrev_u32 v{T+4}, 64, v{T+1}
    v_mul_u32_u24 v{T+4}, 72, v{T+4}
    v_add_u32 v{T+4}, 16, v{T+4}
    """)
    for j in range(8): A(f"s_mov_b32 s{40+j}, {(18*(j>>1)+(j&1))*1152}")
    A(f"""
    {name}_w3:
    v_mul_u32_u24 v{T+4}, 1152, v{T+4}
    v_lshl_add_u32 v{T+1}, v{T}, 4, v{T+4}
    {name}_wload:
    s_and_b32 s{SSRC+1}, s{SSRC+1}, 0xffff
    s_mov_b32 s{SSRC+3}, 0x20000
    """)
    for j in range(8):
        A(f"buffer_load_dwordx4 {v(RAW+4*j,4)}, v{T+1}, {s(SSRC,4)}, s{40+j} offen")
    A(f"""
    v_mov_b32 v{KA}, v3
    v_mov_b32 v{T}, 18
    v_cmp_gt_u32 vcc, 18, v1
    v_cndmask_b32 v{T}, v{T}, v1, vcc
    v_subrev_u32 v{T+1}, 20, v1
    v_cmp_gt_u32 vcc, 8, v{T+1}
    v_cndmask_b32 v{T}, v{T}, 0, vcc
    v_lshrrev_b32 v{T+1}, 5, v2
    v_mul_u32_u24 v{T+1}, 304, v{T+1}
    v_lshl_add_u32 v{VA}, v{T}, 4, v{T+1}
    v_mov_b32 v{QT+1}, 0
    v_mov_b32 v{QT+2}, 0
    """)
    for r in range(16): A(f"v_mov_b32 v{O+r}, 0")
    for r in range(16): A(f"v_mov_b32 v{P+r}, 0")
    def koff(u, i): return (u >> 2) * KV_CHUNK + ((u & 3) * 2 + i) * 1024
    def voff(u, q): return (u >> 2) * KV_CHUNK + 9216 + ((u & 3) * 4 + q) * VFRAG
    def rdK(u, i): return f"ds_read_b128 {v(KF+4*i,4)}, v{KA} offset:{koff(u,i)}"
    def rdV(u, q): return f"ds_read_b128 {v(VF+4*q,4)}, v{VA} offset:{voff(u,q)}"
    def rdT(c, b): return f"ds_read_b128 {v(KT[b],4)}, v{KA} offset:{c*KV_CHUNK+8192}"
    def mM(buf, i, c): return f"v_mfma_f32_32x32x16_bf16 {v(S[buf]+16*i,16)}, {v(KF+4*i,4)}, {v(Q,4)}, {c}"
    def mT(buf, u, kt): return f"v_mfma_f32_32x32x4_2b_bf16 {v(S[buf],32)}, {v(kt+2*((u&3)>>1),2)}, {v(QT+2*(u&1),2)}, {v(S[buf],32)}"
    def mPV(q): return f"v_mfma_f32_32x32x16_bf16 {v(O,16)}, {v(VF+4*q,4)}, {v(P+4*q,4)}, {v(O,16)}"
    A(f"s_waitcnt vmcnt({19-4+8})\n v_mov_b32 v{QT+3}, v{QT}\n s_barrier")
    if force_fallback: A(f"s_waitcnt vmcnt(0)\n s_barrier\n s_branch {name}_shuffle_first")
    A(rdK(0, 0)); A(rdK(0, 1)); A(rdT(0, 0))
    for q in range(4): A(rdV(0, q))
    A("s_waitcnt lgkmcnt(4)")
    A(mM(1, 0, "0")); A(mM(1, 1, "0")); A(mT(1, 0, KT[0]))
    b = S[1]
    A(f"v_max3_f32 v{T}, v{b}, v{b+1}, v{b+2}\n v_max3_f32 v{T+1}, v{b+3}, v{b+4}, v{b+5}")
    for r in range(6, 30, 4):
        A(f"v_max3_f32 v{T}, v{T}, v{b+r}, v{b+r+1}\n v_max3_f32 v{T+1}, v{T+1}, v{b+r+2}, v{b+r+3}")
    A(f"""
    v_max3_f32 v{T}, v{T}, v{b+30}, v{b+31}
    v_max_f32 v{T}, v{T}, v{T+1}
    v_mov_b32 v{T+1}, v{T}
    v_permlane32_swap_b32 v{T}, v{T+1}
    v_max_f32 v{T}, v{T}, v{T+1}
    """)
    for r in range(16): A(f"v_sub_f32 v{NEGM+r}, 0, v{T}")
    A(mM(0, 0, v(NEGM, 16))); A(rdK(1, 0)); A(mM(0, 1, v(NEGM, 16))); A(rdK(1, 1)); A(mT(0, 0, KT[0]))
    A("s_mov_b32 s36, 0\n s_waitcnt lgkmcnt(0)\n s_nop 15\n s_nop 3")
    A(f".p2align 6\n {name}_loop:")
    for u in range(4):
        cur = S[u & 1]; nb = (u + 1) & 1
        for q in range(4):
            val = [f"v_exp_f32 v{cur+8*q+r}, v{cur+8*q+r}" for r in range(8)]
            cv = [f"v_cvt_pk_bf16_f32 v{P+4*q+r}, v{cur+8*q+2*r}, v{cur+8*q+2*r+1}" for r in range(4)]
            seq = val[0:2] + ["PV"] + val[2:4] + [cv[0]] + val[4:6] + [cv[1], "M"] + val[6:8] + [cv[2], cv[3]]
            if q == 2: seq = val[0:2] + ["PV"] + val[2:4] + [cv[0], "M"] + val[4:6] + [cv[1]] + val[6:8] + [cv[2], cv[3]]
            for l in seq:
                if l == "PV":
                    pq = (q - 1) & 3
                    A("s_waitcnt lgkmcnt(4)")
                    A(mPV(pq))
                    A(rdV(u, 3) if q == 0 else rdV(u + 1, pq))
                elif l == "M":
                    if q < 2:
                        A(mM(nb, q, v(NEGM, 16))); A(rdK(u + 2, q))
                    elif q == 2:
                        A(mT(nb, u + 1, KT[0]))
                    elif u == 2:
                        A(rdT(1, 0))
                else: A(l)
    A(f"""
    v_add_u32 v{KA}, {KV_CHUNK}, v{KA}
    v_add_u32 v{VA}, {KV_CHUNK}, v{VA}
    s_add_u32 s36, s36, 1
    s_cmp_gt_u32 s36, 3
    s_cbranch_scc1 {name}_lt
    s_cmp_eq_u32 s36, 3
    s_cbranch_scc1 {name}_shuffle
    s_cmp_eq_u32 s36, 1
    s_cbranch_scc1 {name}_c1
    s_waitcnt vmcnt(8)
    s_barrier
    s_branch {name}_loop
    {name}_c1:
    s_waitcnt vmcnt({19-6+8})
    s_barrier
    s_branch {name}_loop
    """)
    def shuffle():
        A("s_waitcnt vmcnt(0)\n s_mov_b32 s37, 0x05040100\n s_mov_b32 s38, 0x07060302")
        A(f"s_cmp_lg_u32 s58, 0")
        for j in range(8):
            for r in range(4):
                A(f"v_perm_b32 v{T+4*j+r}, v{RAW+8*r+4+(j>>1)}, v{RAW+8*r+(j>>1)}, s{37+(j&1)}")
    A(f"{name}_shuffle:")
    shuffle()
    A(f"s_cbranch_scc1 {name}_loop")
    for j in range(8):
        A(f"buffer_store_dwordx4 {v(T+4*j,4)}, v{WA if j < 4 else WB}, {s(SWS,4)}, 0 offen offset:{16*(j&3)}")
    A(f"s_branch {name}_loop")
    A(f"""
    {name}_lt:
    s_cmp_lt_u32 s36, 8
    s_cbranch_scc1 {name}_loop
    s_waitcnt lgkmcnt(0)
    """)
    A(mPV(3))
    A(f"""
    v_cmp_gt_u32 vcc, 32, v2
    v_cndmask_b32 v{NEGM}, v{O+12}, v{O+10}, vcc
    v_mov_b32 v{NEGM+1}, {hex(f2u(2.0**30))}
    v_cmp_nlt_f32 vcc, v{NEGM}, v{NEGM+1}
    s_cbranch_vccnz {name}_slow
    {name}_fin:
    v_cmp_gt_u32 vcc, 32, v2
    v_cndmask_b32 v{NEGM}, v{O+12}, v{O+10}, vcc
    v_rcp_f32 v{NEGM}, v{NEGM}
    s_mul_i32 s27, s26, {36*1024}
    s_add_u32 s27, s27, {OF_OFF}
    s_lshl_b32 s28, s25, 10
    s_add_u32 s28, s28, s27
    s_lshr_b32 s29, s25, 2
    s_lshl_b32 s29, s29, 9
    s_add_u32 s27, s27, s29
    s_and_b32 s29, s25, 3
    s_lshl_b32 s29, s29, 2
    s_add_u32 s27, s27, s29
    s_add_u32 s27, s27, {32*1024}
    """)
    for r in range(10): A(f"v_mul_f32 v{O+r}, v{O+r}, v{NEGM}")
    for r in range(5): A(f"v_cvt_pk_bf16_f32 v{P+r}, v{O+2*r}, v{O+2*r+1}")
    A(f"""
    buffer_store_dwordx4 {v(P,4)}, v3, {s(SWS,4)}, s28 offen
    s_and_saveexec_b64 s[60:61], vcc
    buffer_store_dword v{P+4}, v3, {s(SWS,4)}, s27 offen
    s_endpgm
    """)
    if force_fallback:
        A(f"{name}_shuffle_first:")
        shuffle()
        A(f"s_cbranch_scc1 {name}_slow")
        for j in range(8):
            A(f"buffer_store_dwordx4 {v(T+4*j,4)}, v{WA if j < 4 else WB}, {s(SWS,4)}, 0 offen offset:{16*(j&3)}")
        A(f"v_add_u32 v{VA}, {8*KV_CHUNK}, v{VA}")
    M = NEGM; AL = NEGM + 1; A1 = NEGM + 2; A2 = NEGM + 3; A3 = NEGM + 4; VB = NEGM + 5; X0 = NEGM + 6; X1 = NEGM + 7
    b = S[0]
    A(f"""
    {name}_slow:
    s_nop 15
    v_subrev_u32 v{VB}, {8*KV_CHUNK}, v{VA}
    v_mov_b32 v{M}, 0xff7fffff
    v_mov_b32 v{KT[0]+1}, 0
    s_mov_b32 s36, 0
    """)
    for r in range(16): A(f"v_mov_b32 v{O+r}, 0")
    A(f"""
    {name}_sloop:
    s_lshr_b32 s37, s36, 2
    s_mul_i32 s37, s37, {KV_CHUNK}
    s_and_b32 s38, s36, 3
    s_lshl_b32 s39, s38, 11
    s_add_u32 s39, s39, s37
    v_add_u32 v{A1}, s39, v3
    s_lshl_b32 s39, s38, 2
    s_add_u32 s39, s39, s37
    v_add_u32 v{A2}, s39, v3
    s_mul_i32 s39, s38, {4*VFRAG}
    s_add_u32 s39, s39, s37
    v_add_u32 v{A3}, s39, v{VB}
    ds_read_b128 {v(KF,4)}, v{A1}
    ds_read_b128 {v(KF+4,4)}, v{A1} offset:1024
    ds_read_b32 v{KT[0]}, v{A2} offset:8192
    """)
    for q in range(4): A(f"ds_read_b128 {v(VF+4*q,4)}, v{A3} offset:{9216+q*VFRAG}")
    A("s_waitcnt lgkmcnt(0)")
    A(mM(0, 0, "0")); A(mM(0, 1, "0")); A(mT(0, 0, KT[0]))
    A(f"v_max3_f32 v{X0}, v{M}, v{b}, v{b+1}")
    for r in range(2, 32, 2): A(f"v_max3_f32 v{X0}, v{X0}, v{b+r}, v{b+r+1}")
    A(f"""
    v_mov_b32 v{X1}, v{X0}
    v_permlane32_swap_b32 v{X0}, v{X1}
    v_max_f32 v{X0}, v{X0}, v{X1}
    v_sub_f32 v{AL}, v{M}, v{X0}
    v_exp_f32 v{AL}, v{AL}
    v_mov_b32 v{M}, v{X0}
    """)
    for r in range(16): A(f"v_mul_f32 v{O+r}, v{O+r}, v{AL}")
    for r in range(32): A(f"v_sub_f32 v{b+r}, v{b+r}, v{M}")
    for r in range(32): A(f"v_exp_f32 v{b+r}, v{b+r}")
    for r in range(16): A(f"v_cvt_pk_bf16_f32 v{P+r}, v{b+2*r}, v{b+2*r+1}")
    for q in range(4): A(mPV(q))
    A(f"""
    s_add_u32 s36, s36, 1
    s_cmp_lt_u32 s36, 32
    s_nop 12
    s_cbranch_scc1 {name}_sloop
    s_branch {name}_fin
    {name}_end:
    s_endpgm
    """)
    body = A.finish()
    launch = (name, 256, 512, 163840)
    return launch, kernel_head(name) + body, kernel_desc(name, 224, 0, 64)
```

```python
from asmlib import *
from layout import *
from k1 import srd

def gen_k3(name):
    A = Asm()
    X = 32; ACC = 176; RES = 208; WF = 224; T = 8
    SX, SWS = 12, 16
    A(f"""
    s_cmp_ge_u32 s2, 144
    s_cbranch_scc1 {name}_end
    s_load_dwordx2 s[4:5], s[0:1], 0
    s_load_dwordx2 s[8:9], s[0:1], 72
    v_lshrrev_b32 v1, 6, v0
    v_and_b32 v2, 63, v0
    v_readfirstlane_b32 s24, v1
    s_and_b32 s25, s2, 7
    s_lshl_b32 s25, s25, 1
    s_lshr_b32 s26, s2, 3
    s_and_b32 s27, s26, 1
    s_add_u32 s25, s25, s27
    s_lshr_b32 s26, s26, 1
    s_lshl_b32 s29, s25, 2
    s_add_u32 s29, s29, s24
    v_lshlrev_b32 v3, 4, v2
    s_mul_i32 s30, s29, {36*1024}
    s_add_u32 s31, s30, {OF_OFF}
    s_mul_i32 s32, s26, {72*1024}
    s_lshl_b32 s33, s24, 10
    s_add_u32 s32, s32, s33
    s_add_u32 s32, s32, {WOF_OFF}
    v_and_b32 v1, 31, v2
    s_lshl_b32 s34, s29, 5
    v_add_u32 v4, s34, v1
    v_mul_u32_u24 v5, 1152, v4
    v_lshrrev_b32 v6, 5, v2
    v_lshl_add_u32 v5, v6, 4, v5
    s_lshl_b32 s35, s26, 7
    s_waitcnt lgkmcnt(0)
    """)
    srd(A, SX, 4, 5, 2359296)
    srd(A, SWS, 8, 9, WS_USED)
    for g in range(18):
        A(f"s_mov_b32 m0, s33\n buffer_load_dwordx4 v3, {s(SWS,4)}, s32 offen lds\n s_add_u32 s33, s33, 4096\n s_add_u32 s32, s32, 4096")
        for k in range(2):
            st = 2*g + k
            A(f"buffer_load_dwordx4 {v(X+4*st,4)}, v3, {s(SWS,4)}, s31 offen offset:{(st&3)*1024}")
            if st & 3 == 3: A("s_add_u32 s31, s31, 4096")
    for a in range(4):
        A(f"buffer_load_dwordx4 {v(RES+4*a,4)}, v5, {s(SX,4)}, s35 offen offset:{32*a}")
    A(f"v_add_u32 v7, 36864, v3")
    NS = 3; KS = 12
    for stage in range(NS):
        A(f"s_waitcnt vmcnt({4 + 54 - 18*(stage+1)})\n s_barrier")
        def rd(st, t):
            f = st*2 + t
            return f"ds_read_b128 {v(WF+4*(f&7),4)}, v{3 if f < 36 else 7} offset:{(f%36)*1024}"
        seq = [(st, t) for st in range(stage*KS, (stage+1)*KS) for t in range(2)]
        for i in range(6): A(rd(*seq[i]))
        for i, (st, t) in enumerate(seq):
            rem = min(5, len(seq) - 1 - i)
            A(f"s_waitcnt lgkmcnt({rem})")
            f = st*2 + t
            c = v(ACC+16*t, 16) if st else "0"
            A(f"v_mfma_f32_32x32x16_bf16 {v(ACC+16*t,16)}, {v(WF+4*(f&7),4)}, {v(X+4*st,4)}, {c}")
            if i + 6 < len(seq): A(rd(*seq[i+6]))
    A(f"""
    s_waitcnt vmcnt(0)
    s_mov_b32 s38, 0x3f803f80
    s_mov_b32 s39, 0x00003f80
    s_mov_b32 s40, 0x3f800000
    s_lshl_b32 s36, s26, 12
    s_add_u32 s36, s36, s30
    s_add_u32 s36, s36, {HF_OFF}
    v_mov_b32 v{T}, 0
    v_mov_b32 v{T+1}, 0
    """)
    for a in range(4):
        b = ACC + 8*a
        for r in range(4):
            A(f"v_dot2_f32_bf16 v{b+2*r}, v{RES+4*a+r}, s39, v{b+2*r}")
            A(f"v_dot2_f32_bf16 v{b+2*r+1}, v{RES+4*a+r}, s40, v{b+2*r+1}")
    for a in range(4):
        b = ACC + 8*a
        for r in range(4): A(f"v_cvt_pk_bf16_f32 v{X+4*a+r}, v{b+2*r}, v{b+2*r+1}")
        A(f"buffer_store_dwordx4 {v(X+4*a,4)}, v3, {s(SWS,4)}, s36 offen offset:{1024*a}")
    for r in range(16): A(f"v_dot2c_f32_bf16 v{T+(r&1)}, s38, v{X+r}")
    A(f"""
    v_add_f32 v{T}, v{T}, v{T+1}
    v_mov_b32 v{T+1}, v{T}
    v_permlane32_swap_b32 v{T}, v{T+1}
    v_add_f32 v{T}, v{T}, v{T+1}
    v_mul_f32 v{T+2}, {hex(f2u(-1.0/64))}, v{T}
    v_mov_b32 v{T+1}, 0
    v_mov_b32 v{T+3}, 0
    """)
    for r in range(16):
        A(f"v_dot2_f32_bf16 v{ACC+2*r}, v{X+r}, s39, v{T+2}")
        A(f"v_dot2_f32_bf16 v{ACC+2*r+1}, v{X+r}, s40, v{T+2}")
    for r in range(16):
        A(f"v_fmac_f32 v{T+1}, v{ACC+2*r}, v{ACC+2*r}\n v_fmac_f32 v{T+3}, v{ACC+2*r+1}, v{ACC+2*r+1}")
    A(f"""
    v_add_f32 v{T+1}, v{T+1}, v{T+3}
    v_mov_b32 v{T+3}, v{T+1}
    v_permlane32_swap_b32 v{T+1}, v{T+3}
    v_add_f32 v{T+1}, v{T+1}, v{T+3}
    s_lshl_b32 s36, s26, 14
    s_add_u32 s36, s36, {ST_OFF}
    v_lshlrev_b32 v4, 3, v4
    buffer_store_dwordx2 {v(T,2)}, v4, {s(SWS,4)}, s36 offen
    {name}_end:
    s_endpgm
    """)
    body = A.finish()
    return (name, 144, 256, 73728), kernel_head(name) + body, kernel_desc(name, 256, 0, 64)
```

```python
from asmlib import *
from layout import *
from k1 import srd

class VM:
    def __init__(self, A): self.A = A; self.ops = []; self.done = 0
    def issue(self, text, tag=None):
        self.A(text); self.ops.append(tag)
        assert len(self.ops) - self.done <= 63, "vmcnt overflow"
    def count(self, tag):
        idx = max(i for i, t in enumerate(self.ops) if t == tag)
        return len(self.ops) - 1 - idx, idx + 1
    def wait(self, tag):
        n, d = self.count(tag)
        if d > self.done:
            self.A(f"s_waitcnt vmcnt({n})"); self.done = d

def gen_k4(name):
    A = Asm(); vm = VM(A)
    X = 112; ACC = 48; WF = 32; NWF = 4; T = 8; E = 16; NM = 28; R2 = 29; SA = 30
    SWS, SW = 12, 16
    A(f"""
    s_cmp_ge_u32 s2, 256
    s_cbranch_scc1 {name}_end
    s_load_dwordx2 s[8:9], s[0:1], 72
    v_lshrrev_b32 v1, 6, v0
    v_and_b32 v2, 63, v0
    v_readfirstlane_b32 s24, v1
    s_and_b32 s25, s2, 7
    s_lshl_b32 s25, s25, 2
    s_lshr_b32 s26, s2, 3
    s_and_b32 s26, s26, 3
    s_add_u32 s25, s25, s26
    s_lshr_b32 s26, s2, 5
    s_lshl_b32 s26, s26, 3
    s_add_u32 s26, s26, s24
    v_lshlrev_b32 v3, 4, v2
    v_and_b32 v1, 31, v2
    s_lshl_b32 s27, s26, 5
    v_add_lshl_u32 v7, v1, s27, 3
    s_mul_i32 s28, s25, {324*1024}
    s_add_u32 s28, s28, {WGU_OFF}
    s_mul_i32 s31, s26, {36*1024}
    s_add_u32 s31, s31, {HF_OFF}
    s_lshl_b32 s32, s24, 10
    s_mov_b32 s33, {ST_OFF}
    s_waitcnt lgkmcnt(0)
    """)
    srd(A, SWS, 8, 9, WS_USED)
    for b in range(9):
        vm.issue(f"buffer_load_dwordx2 {v(ACC+2*b,2)}, v7, {s(SWS,4)}, s33 offen", "st")
        A("s_add_u32 s33, s33, 16384")
    A(f"""
    s_add_u32 s{SW}, s8, s28
    s_addc_u32 s{SW+1}, s9, 0
    s_and_b32 s{SW+1}, s{SW+1}, 0xffff
    s_mov_b32 s{SW+2}, {324*1024}
    s_mov_b32 s{SW+3}, 0x20000
    """)
    def dma(r, k):
        p = 16*r + 8*k
        if p >= 324: return
        A(f"s_add_u32 m0, s32, {(p%144)*1024}\n s_add_u32 s34, s32, {p*1024}")
        vm.issue(f"buffer_load_dwordx4 v3, {s(SW,4)}, s34 offen lds", ("R", r))
    def hload(st):
        vm.issue(f"buffer_load_dwordx4 {v(X+4*st,4)}, v3, {s(SWS,4)}, s31 offen offset:{(st&3)*1024}", ("h", st))
        if st & 3 == 3: A("s_add_u32 s31, s31, 4096")
    cuts = [0, 6, 11, 16, 22, 27, 32, 36]
    for r in range(7):
        dma(r, 0); dma(r, 1)
        for st in range(cuts[r], cuts[r+1]): hload(st)
    A(f"""
    v_mov_b32 v4, v3
    v_add_u32 v5, 65536, v3
    v_add_u32 v6, 131072, v3
    v_lshrrev_b32 v{T}, 4, v1
    v_mul_u32_u24 v{T}, 147456, v{T}
    v_lshrrev_b32 v{T+1}, 5, v2
    v_lshl_add_u32 v{T}, v{T+1}, 8, v{T}
    v_and_b32 v{T+1}, 15, v2
    v_lshl_add_u32 v{SA}, v{T+1}, 4, v{T}
    s_mul_i32 s35, s26, 294912
    s_mul_i32 s36, s25, {9*512}
    s_add_u32 s35, s35, s36
    s_add_u32 s35, s35, {HH_OFF}
    s_add_u32 s36, s35, 4096
    s_mov_b32 s39, 0x00003f80
    s_mov_b32 s40, 0x3f800000
    """)
    vm.wait("st")
    A(f"v_add_f32 v{T}, v{ACC}, v{ACC+2}\n v_add_f32 v{T+1}, v{ACC+1}, v{ACC+3}")
    for b in range(2, 9): A(f"v_add_f32 v{T}, v{T}, v{ACC+2*b}\n v_add_f32 v{T+1}, v{T+1}, v{ACC+2*b+1}")
    A(f"v_mul_f32 v{NM}, {hex(f2u(-1.0/576))}, v{T}\n s_mov_b32 s41, {hex(f2u(1.0/64))}\n v_mov_b32 v{T+2}, 0")
    for b in range(9):
        A(f"v_fma_f32 v{T+3}, v{ACC+2*b}, s41, v{NM}\n v_fmac_f32 v{T+2}, v{T+3}, v{T+3}")
    A(f"""
    v_fmac_f32 v{T+1}, {hex(f2u(64.0))}, v{T+2}
    v_mov_b32 v{T+2}, {hex(f2u(1e-5))}
    v_fmac_f32 v{T+2}, {hex(f2u(1.0/576))}, v{T+1}
    v_rcp_f32 v{R2}, v{T+2}
    """)
    def center(st):
        o = []
        for r in range(4):
            o.append(f"v_dot2_f32_bf16 v{T+2*r}, v{X+4*st+r}, s39, v{NM}")
            o.append(f"v_dot2_f32_bf16 v{T+2*r+1}, v{X+4*st+r}, s40, v{NM}")
        for r in range(4):
            o.append(f"v_cvt_pk_bf16_f32 v{X+4*st+r}, v{T+2*r}, v{T+2*r+1}")
        return o
    def epi(tl):
        b = ACC + 16*(tl % 4); o = []
        ob = E + 4*(tl % 3)
        for qd in range(2):
            g = b + 8*qd; u = g + 4
            for r in range(4): o.append(f"v_max_f32 v{g+r}, 0, v{g+r}")
            for r in range(4): o.append(f"v_mul_f32 v{u+r}, v{u+r}, v{R2}")
            for r in range(4): o.append(f"v_mul_f32 v{g+r}, v{g+r}, v{u+r}")
            for r in range(2): o.append(f"v_cvt_pk_bf16_f32 v{ob+2*qd+r}, v{g+2*r}, v{g+2*r+1}")
        o.append(("st", f"buffer_store_dwordx4 {v(ob,4)}, v{SA}, {s(SWS,4)}, {'s35' if tl < 8 else 's36'} offen offset:{(tl%8)*512}"))
        return o
    seq = [(st, t) for st in range(36) for t in range(3)] + [(st, t) for t in range(3, 9) for st in range(36)]
    def rd(i):
        q = i % 144
        return f"ds_read_b128 {v(WF+4*(i%NWF),4)}, v{4+(q>>6)} offset:{(q&63)*1024}"
    pend = []
    def barrier(r):
        vm.wait(("R", r)); A("s_barrier")
        pend.append((r + 7, 0)); pend.append((r + 7, 1))
    vm.wait(("h", 0))
    for l in center(0): A(l)
    barrier(0)
    for i in range(NWF): A(rd(i))
    fill = []
    for i, (st, t) in enumerate(seq):
        if i < 108 and t == 0 and st < 35:
            vm.wait(("h", st + 1)); fill = center(st + 1)
        if i == 108 + 1: fill = epi(0) + epi(1) + epi(2)
        if i > 108 + 36 and (i - 108) % 36 == 1: fill = epi(t - 1)
        A(f"s_waitcnt lgkmcnt({min(NWF-1, 323-i)})")
        acc = v(ACC + 16*(t % 4), 16)
        A(f"v_mfma_f32_32x32x16_bf16 {acc}, {v(WF+4*(i%NWF),4)}, {v(X+4*st,4)}, {acc if st else '0'}")
        n = i + NWF
        if n < 324:
            if n % 16 == 0: barrier(n // 16)
            A(rd(n))
        if pend: dma(*pend.pop(0))
        k = 4 if i < 108 else (3 if i < 144 else 1)
        for l in fill[:k]:
            if isinstance(l, tuple): vm.issue(l[1], "st")
            else: A(l)
        fill = fill[k:]
    assert not fill
    for l in epi(8):
        if isinstance(l, tuple): vm.issue(l[1], "st")
        else: A(l)
    A(f"{name}_end:\n s_endpgm")
    body = A.finish()
    return (name, 256, 512, 147456), kernel_head(name) + body, kernel_desc(name, 256, 0, 64)
```

```python
from asmlib import *
from layout import *
from k1 import srd

def gen_k5(name):
    A = Asm()
    HR = 16; WF = 112; ACC = 148
    SWS, SW, SH = 12, 16, 20
    A(f"""
    s_cmp_ge_u32 s2, 256
    s_cbranch_scc1 {name}_end
    s_load_dwordx2 s[8:9], s[0:1], 72
    v_lshrrev_b32 v1, 6, v0
    v_and_b32 v2, 63, v0
    v_readfirstlane_b32 s24, v1
    s_bfe_u32 s25, s2, 0x20001
    s_and_b32 s26, s2, 1
    s_lshl_b32 s26, s26, 3
    s_bfe_u32 s27, s2, 0x30003
    s_add_u32 s26, s26, s27
    s_lshr_b32 s27, s2, 6
    v_lshlrev_b32 v3, 4, v2
    v_add_u32 v4, 147456, v3
    s_lshl_b32 s28, s27, 2
    s_add_u32 s28, s28, s25
    s_mul_i32 s28, s28, {324*1024}
    s_add_u32 s28, s28, {WD_OFF}
    s_lshl_b32 s29, s26, 2
    s_add_u32 s29, s29, s24
    s_mul_i32 s31, s29, 294912
    s_mul_i32 s30, s25, {36*1024}
    s_add_u32 s31, s31, s30
    s_add_u32 s31, s31, {HH_OFF}
    s_mul_i32 s32, s24, 9216
    s_waitcnt lgkmcnt(0)
    """)
    srd(A, SWS, 8, 9, WS_USED)
    srd(A, SH, 8, 9, WS_USED)
    A(f"""
    s_add_u32 s{SW}, s8, s28
    s_addc_u32 s{SW+1}, s9, 0
    s_and_b32 s{SW+1}, s{SW+1}, 0xffff
    s_mov_b32 s{SW+2}, {324*1024}
    s_mov_b32 s{SW+3}, 0x20000
    s_mov_b32 s33, s32
    s_mov_b32 s34, s32
    """)
    ops = []
    def dma_lines():
        o = []
        for i in range(9):
            o.append(f"s_add_u32 m0, s34, {i*1024}\n s_add_u32 s35, s33, {i*1024}\n buffer_load_dwordx4 v3, {s(SW,4)}, s35 offen lds")
        return o
    dma_adv = f"s_add_u32 s33, s33, 36864\n s_add_u32 s34, s34, 36864\n s_cmp_ge_u32 s34, 147456\n s_cselect_b32 s34, s32, s34"
    def hline(k, n2):
        return f"buffer_load_dwordx4 {v(HR+8*k+4*n2,4)}, v{3+n2}, {s(SH,4)}, s31 offen offset:{(k&3)*1024}"
    def trace():
        tr = []; waits = {}
        def cnt(tag):
            idx = max(i for i, t in enumerate(tr) if t == tag); return len(tr) - 1 - idx
        for r in range(3):
            if r < 2: tr += [("R", r)] * 9
            for k in range(4): tr += [("h", 4*r + k)] * 2
        waits[("B", 0)] = cnt(("R", 0))
        tr += [("R", 2)] * 9
        for st in range(36):
            waits[("h", st)] = cnt(("h", st))
            if st % 4 == 3:
                waits[("B", st//4 + 1)] = cnt(("R", st//4 + 1))
                tr += [("R", st//4 + 3)] * 9
            tr += [("h", st + 12)] * 2
        return waits
    W = trace()
    for r in range(3):
        if r < 2:
            for l in dma_lines(): A(l)
            A(dma_adv)
        for k in range(4):
            A(hline(4*r + k, 0)); A(hline(4*r + k, 1))
        A("s_add_u32 s31, s31, 4096")
    for r in range(72): A(f"v_mov_b32 v{ACC+r}, 0")
    A(f"v_mov_b32 v5, v3\n s_mov_b32 s36, 0\n s_mov_b32 s37, 0")
    A(f"s_waitcnt vmcnt({W[('B',0)]})\n s_barrier")
    for l in dma_lines(): A(l)
    A(dma_adv)
    for t in range(9): A(f"ds_read_b128 {v(WF+4*t,4)}, v5 offset:{t*1024}")
    A(f".p2align 6\n {name}_loop:")
    A(f"s_cmp_eq_u32 s36, 2\n s_cselect_b32 s{SH+2}, 0, s{SH+2}")
    for k in range(12):
        A(f"s_waitcnt vmcnt({min(W[('h', k + 12*it)] for it in range(3))})")
        dm = []
        for t in range(9):
            A("s_waitcnt lgkmcnt(8)")
            for n2 in range(2):
                acc = v(ACC + (2*t + n2)*4, 4)
                A(f"v_mfma_f32_16x16x32_bf16 {acc}, {v(WF+4*t,4)}, {v(HR+8*k+4*n2,4)}, {acc}")
            if t == 0 and k % 4 == 3:
                A(f"s_waitcnt vmcnt({min(W[('B', k//4 + 1 + 3*it)] for it in range(3))})\n s_barrier")
                A(f"s_add_u32 s37, s37, 36864\n s_cmp_ge_u32 s37, 147456\n s_cselect_b32 s37, 0, s37\n v_add_u32 v5, s37, v3")
                dm = dma_lines()
            A(f"ds_read_b128 {v(WF+4*t,4)}, v5 offset:{(((k+1)%4)*9+t)*1024}")
            if dm: A(dm.pop(0))
        if k % 4 == 3: A(dma_adv)
        A(hline(k, 0)); A(hline(k, 1))
        if k % 4 == 3: A("s_add_u32 s31, s31, 4096")
    A(f"""
    s_add_u32 s36, s36, 1
    s_cmp_lt_u32 s36, 3
    s_cbranch_scc1 {name}_loop
    s_lshl_b32 s38, s25, 6
    s_lshl_b32 s39, s26, 2
    s_add_u32 s38, s38, s39
    s_add_u32 s38, s38, s27
    s_lshl_b32 s38, s38, 2
    s_add_u32 s38, s38, s24
    s_mul_i32 s38, s38, {18*1024}
    s_add_u32 s38, s38, {PART_OFF}
    """)
    for q in range(18):
        A(f"buffer_store_dwordx4 {v(ACC+4*q,4)}, v3, {s(SWS,4)}, s38 offen offset:{(q&3)*1024}")
        if q & 3 == 3: A("s_add_u32 s38, s38, 4096")
    A(f"{name}_end:\n s_endpgm")
    body = A.finish()
    return (name, 256, 256, 147456), kernel_head(name) + body, kernel_desc(name, 224, 0, 64)

def gen_k6(name):
    A = Asm()
    PT = 32; RES = 8; SWS, SO = 12, 16
    A(f"""
    s_cmp_ge_u32 s2, 256
    s_cbranch_scc1 {name}_end
    s_load_dwordx2 s[8:9], s[0:1], 72
    s_load_dwordx2 s[4:5], s[0:1], 56
    v_lshrrev_b32 v1, 6, v0
    v_and_b32 v2, 63, v0
    v_readfirstlane_b32 s24, v1
    v_lshlrev_b32 v3, 4, v2
    s_mul_i32 s25, s2, {18*1024}
    s_lshl_b32 s26, s24, 10
    s_add_u32 s25, s25, s26
    s_add_u32 s25, s25, {PART_OFF}
    s_lshr_b32 s27, s2, 4
    s_lshl_b32 s27, s27, 2
    s_and_b32 s28, s2, 3
    s_add_u32 s27, s27, s28
    s_bfe_u32 s28, s2, 0x20002
    v_and_b32 v4, 15, v2
    v_lshrrev_b32 v5, 4, v2
    s_lshl_b32 s29, s24, 4
    v_add_u32 v4, s29, v4
    s_waitcnt lgkmcnt(0)
    """)
    srd(A, SWS, 8, 9, WS_USED)
    srd(A, SO, 4, 5, 2359296)
    for ks in range(4):
        for t in range(9):
            A(f"s_add_u32 s30, s25, {ks*256*18*1024 + t*2048}\n buffer_load_dwordx4 {v(PT+36*ks+4*t,4)}, v3, {s(SWS,4)}, s30 offen")
    A(f"""
    v_lshlrev_b32 v6, 9, v5
    v_lshl_add_u32 v6, v4, 4, v6
    s_mul_i32 s30, s27, 36
    s_mul_i32 s31, s28, 9
    s_add_u32 s30, s30, s31
    s_lshl_b32 s30, s30, 10
    s_add_u32 s30, s30, {HF_OFF}
    s_add_u32 s31, s30, 4096
    s_add_u32 s32, s30, 8192
    buffer_load_dwordx4 {v(RES,4)}, v6, {s(SWS,4)}, s30 offen
    buffer_load_dwordx4 {v(RES+4,4)}, v6, {s(SWS,4)}, s30 offen offset:2048
    buffer_load_dwordx4 {v(RES+8,4)}, v6, {s(SWS,4)}, s31 offen
    buffer_load_dwordx4 {v(RES+12,4)}, v6, {s(SWS,4)}, s31 offen offset:2048
    v_lshrrev_b32 v7, 1, v5
    v_lshlrev_b32 v7, 9, v7
    v_lshl_add_u32 v7, v4, 4, v7
    v_and_b32 v1, 1, v5
    v_lshl_add_u32 v7, v1, 3, v7
    buffer_load_dwordx2 {v(RES+16,2)}, v7, {s(SWS,4)}, s32 offen
    s_lshl_b32 s33, s27, 5
    v_add_u32 v4, s33, v4
    v_mul_u32_u24 v4, 1152, v4
    v_lshl_add_u32 v6, v5, 4, v4
    v_lshl_add_u32 v7, v5, 3, v4
    s_mul_i32 s33, s28, 288
    s_mov_b32 s39, 0x00003f80
    s_mov_b32 s40, 0x3f800000
    s_waitcnt vmcnt(0)
    """)
    for r in range(36):
        A(f"v_add_f32 v{PT+r}, v{PT+r}, v{PT+36+r}\n v_add_f32 v{PT+72+r}, v{PT+72+r}, v{PT+108+r}")
    for r in range(36): A(f"v_add_f32 v{PT+r}, v{PT+r}, v{PT+72+r}")
    for r in range(18):
        A(f"v_dot2_f32_bf16 v{PT+2*r}, v{RES+r}, s39, v{PT+2*r}\n v_dot2_f32_bf16 v{PT+2*r+1}, v{RES+r}, s40, v{PT+2*r+1}")
    for r in range(18): A(f"v_cvt_pk_bf16_f32 v{PT+36+r}, v{PT+2*r}, v{PT+2*r+1}")
    for p in range(4): A(f"buffer_store_dwordx4 {v(PT+36+4*p,4)}, v6, {s(SO,4)}, s33 offen offset:{64*p}")
    A(f"buffer_store_dwordx2 {v(PT+52,2)}, v7, {s(SO,4)}, s33 offen offset:256")
    A(f"{name}_end:\n s_endpgm")
    body = A.finish()
    return (name, 256, 128, 0), kernel_head(name) + body, kernel_desc(name, 176, 0, 64)
```

```python
QF_OFF  = 0x0000000
QT_OFF  = 0x0200000
KV_OFF  = 0x0240000
KV_HEAD = 151552
KV_CHUNK = 18944
VFRAG = 608
OF_OFF  = 0x0700000
HF_OFF  = 0x0940000
ST_OFF  = 0x0B80000
WOF_OFF = 0x0C00000
WGU_OFF = 0x0D00000
WD_OFF  = 0x1800000
HH_OFF  = 0x1E00000
PART_OFF= 0x3000000
FLAG_OFF= 0x4200000
WS_USED = 0x4400000
import math
QSCALE = math.log2(math.e) / math.sqrt(18.0)
import struct
def f2u(x): return struct.unpack("<I", struct.pack("<f", x))[0]
```

```python
import sys
from k1 import gen_k1
from k2 import gen_k2
from k3 import gen_k3
from k4 import gen_k4
from k5 import gen_k5, gen_k6
NAME = "sequential_preLN__softmax_full_mha__glu_gated_reglu__prompt"
def build(force_fallback=False):
    ks = [gen_k1("qkv_kernel"), gen_k2("attn_kernel", force_fallback), gen_k3("wo_kernel"), gen_k4("ffn1_kernel"), gen_k5("ffn2_kernel"), gen_k6("red_kernel")]
    hdr = open(f"cdna_kernels/{NAME}.s.ref").read().split("; Override launch")[0]
    out = hdr
    for (n, g, b, l), _, _ in ks:
        out += f"; @launch kernel={n} grid=({g},1,1) block=({b},1,1) lds={l}\n"
    out += '.amdgcn_target "amdgcn-amd-amdhsa--gfx950"\n'
    for _, code, _ in ks: out += code
    for _, _, d in ks: out += d
    return out
if __name__ == "__main__":
    path = sys.argv[1] if len(sys.argv) > 1 else f"cdna_kernels/{NAME}.s"
    open(path, "w").write(build("ff" in sys.argv[2:]))
```

```python
import re

TRANS = ("v_exp_", "v_log_", "v_rcp_", "v_rsq_", "v_sqrt_", "v_sin_", "v_cos_")
def passes(op):
    if "32x32x4" in op: return 16
    if "32x32x16" in op or "32x32x8" in op: return 8
    if "16x16x32" in op or "16x16x16" in op: return 4
    raise ValueError(op)
IDX = {2: 0, 4: 1, 8: 2, 16: 3}
T_D_OTHER = [5, 8, 12, 20]
T_D_COVER = [4, 6, 10, 18]
T_C_WAR = [1, 3, 7, 15]

_reg = re.compile(r"^(-|abs\()?([vas])(\d+)\)?$")
_rng = re.compile(r"^(-)?([vas])\[(\d+):(\d+)\]$")
def regs_of(tok):
    tok = tok.strip()
    m = _reg.match(tok)
    if m: return [(m.group(2), int(m.group(3)))]
    m = _rng.match(tok)
    if m: return [(m.group(2), i) for i in range(int(m.group(3)), int(m.group(4)) + 1)]
    if tok == "vcc": return [("s", 106), ("s", 107)]
    if tok == "vcc_lo": return [("s", 106)]
    if tok == "vcc_hi": return [("s", 107)]
    if tok == "exec": return [("s", 126), ("s", 127)]
    if tok == "m0": return [("s", 124)]
    return []

class Ins:
    def __init__(self, text):
        self.text = text
        t = text.split(";")[0].strip()
        self.label = t.endswith(":")
        self.directive = t.startswith(".") and not self.label
        self.op = ""
        self.w = set(); self.r = set(); self.kind = "none"
        self.srcc = []; self.ab = set(); self.d = []
        self.data = set()
        if self.label or self.directive or not t: return
        parts = t.split(None, 1)
        op = self.op = parts[0]
        rest = parts[1] if len(parts) > 1 else ""
        ops = [o.strip() for o in re.split(r",(?![^\[]*\])", rest)]
        mods = ""
        if ops:
            sp = ops[-1].split(None, 1)
            if len(sp) > 1: ops[-1], mods = sp[0], sp[1]
        self.mods = mods
        R = lambda i: regs_of(ops[i]) if i < len(ops) else []
        allr = lambda a: [x for i in range(a, len(ops)) for x in R(i)]
        if op.startswith("v_mfma"):
            self.kind = "mfma"; self.d = R(0); self.w = set(R(0)); self.ab = set(R(1) + R(2)); self.srcc = R(3)
            self.r = self.ab | set(self.srcc); self.p = passes(op)
        elif op.startswith("v_cmp"):
            self.kind = "valu"; self.w = set(R(0)); self.r = set(allr(1))
            if op.startswith("v_cmpx"): self.w |= set(regs_of("exec"))
        elif op.startswith("v_readfirstlane") or op.startswith("v_readlane"):
            self.kind = "valu"; self.w = set(R(0)); self.r = set(allr(1))
        elif op.startswith("v_permlane") or op.startswith("v_swap"):
            self.kind = "valu"; self.w = set(R(0) + R(1)); self.r = set(R(0) + R(1))
        elif op.startswith("v_"):
            self.kind = "valu"; self.w = set(R(0)); self.r = set(allr(1))
            if "_co_" in op: self.w |= set(R(1)); self.r = set(allr(2))
            if op.startswith(("v_fmac", "v_dot2c", "v_pk_fmac")) or "UNUSED_PRESERVE" in mods or "_dpp" in op: self.r |= set(R(0))
            if op.startswith("v_cndmask") and len(ops) == 3: self.r |= set(regs_of("vcc"))
        elif op.startswith("ds_"):
            self.kind = "ds"
            if op.startswith(("ds_read", "ds_bpermute", "ds_permute", "ds_swizzle")): self.w = set(R(0)); self.r = set(allr(1))
            else: self.r = set(allr(0))
        elif op.startswith(("buffer_", "global_")):
            self.kind = "vmem"
            lds = (" lds" in " " + mods) or "_lds_" in op
            self.lds = lds
            if "load" in op and not lds: self.w = set(R(0)); self.r = set(allr(1))
            elif "atomic" in op and "sc0" in mods and op.startswith("global"): self.w = set(R(0)); self.r = set(allr(1))
            else:
                self.r = set(allr(0))
                if "atomic" in op and "sc0" in mods: self.w = set(R(0))
                if "store" in op and ("x3" in op or "x4" in op):
                    self.data = set(R(0)) if op.startswith("buffer") else set(R(1))
            if lds: self.r |= {("s", 124)}
        elif op.startswith("s_"):
            self.kind = "salu"
            if op.startswith(("s_cmp", "s_cbranch", "s_branch", "s_waitcnt", "s_barrier", "s_nop", "s_endpgm", "s_sleep", "s_setprio")):
                self.r = set(allr(0))
            else:
                self.w = set(R(0)); self.r = set(allr(1))
                if "saveexec" in op: self.w |= set(regs_of("exec"))
        else:
            raise ValueError("unknown op: " + text)
    def states(self):
        if self.kind == "none": return 0
        if self.op == "s_nop": return int(self.text.split()[1], 0) + 1
        return 1

def need(p, c):
    n = 0
    vw = {x for x in p.w if x[0] != "s"}
    sw = {x for x in p.w if x[0] == "s"}
    if p.kind == "mfma":
        i = IDX[p.p]
        if c.kind == "mfma":
            if vw & c.ab: n = max(n, T_D_OTHER[i])
            if vw & set(c.srcc):
                if not (c.srcc == p.d and c.p == p.p): n = max(n, T_D_COVER[i])
            if vw & c.w and not (vw & set(c.srcc)): n = max(n, T_D_COVER[i])
        elif c.kind in ("valu", "ds", "vmem"):
            if vw & (c.r | c.w): n = max(n, T_D_OTHER[i])
            if c.kind == "valu" and set(p.srcc) & c.w: n = max(n, T_C_WAR[i])
            if c.kind in ("ds", "vmem") and set(p.srcc) & c.w: n = max(n, T_C_WAR[i])
    elif p.kind == "valu":
        isdot = p.op.startswith("v_dot")
        if c.kind == "mfma":
            if vw & c.r: n = max(n, 3 if isdot else 2)
            if ("s", 126) in sw: n = max(n, 4)
        if c.kind == "valu":
            if p.op.startswith(TRANS) and vw & c.r and not c.op.startswith(TRANS): n = max(n, 1)
            if c.op.startswith("v_permlane") and vw & c.r: n = max(n, 2)
            if c.op.startswith(("v_readlane", "v_readfirstlane")) and vw & c.r: n = max(n, 1)
            if "_dpp" in c.op and vw & c.r: n = max(n, 2)
            if sw & c.r:
                n = max(n, 4 if c.op.startswith(("v_readlane", "v_writelane")) else 2)
            if ("s", 126) in sw:
                if "_dpp" in c.op: n = max(n, 5)
                if c.op.startswith(("v_readlane", "v_readfirstlane", "v_writelane", "v_permlane")): n = max(n, 4)
            if ("sdwa" in p.op or "op_sel" in p.mods) and not p.op.startswith("v_pk") and vw & (c.r | c.w): n = max(n, 1)
            if isdot:
                if c.op != p.op and vw & (c.r | c.w): n = max(n, 3)
                if c.op == p.op:
                    toks = [t.strip() for t in re.split(r",(?![^\[]*\])", c.text.split(None, 1)[1])]
                    ab = set(regs_of(toks[1]) + regs_of(toks[2].split()[0]))
                    if vw & ab: n = max(n, 3)
        if c.kind in ("vmem", "ds") and isdot and vw & c.r: n = max(n, 3)
        if c.kind == "vmem" and sw & c.r: n = max(n, 5)
        if c.kind == "salu" and sw & c.r: n = max(n, 1)
    elif p.kind == "vmem":
        if p.data and c.kind == "valu" and p.data & c.w: n = max(n, 2)
        elif p.data and p.data & c.w: n = max(n, 1)
    elif p.kind == "salu":
        if ("s", 124) in sw and c.kind == "vmem" and getattr(c, "lds", False): n = max(n, 1)
    return n

DIAG = False
STAMP_OFF = 0x4280000
class Asm:
    def __init__(self, kidx=0):
        self.lines = []
        self.kidx = kidx
    def stamp(self, i):
        if not DIAG: return
        self(f"s_memtime s[{64+2*i}:{65+2*i}]")
        if i == 0:
            self("s_memrealtime s[92:93]\n s_mov_b32 s98, s2")
            for k in range(1, 13): self(f"s_mov_b32 s{64+2*k}, 0")
    def flush(self, sws, wave_sgpr=24, tmp=1):
        if not DIAG: return
        self(f"s_mov_b64 exec, -1\n s_waitcnt vmcnt(0)\n s_memtime s[90:91]\n s_memrealtime s[94:95]\n s_waitcnt lgkmcnt(0)")
        self(f"s_lshl_b32 s96, s98, 3\n s_add_u32 s96, s96, s{wave_sgpr}\n s_lshl_b32 s96, s96, 6\n s_add_u32 s96, s96, {STAMP_OFF + self.kidx*256*8*64}")
        self(f"v_mov_b32 v{tmp}, 0")
        for k in range(16):
            self(f"v_mov_b32 v{tmp+1}, s{64+2*k}\n buffer_store_dword v{tmp+1}, v{tmp}, s[{sws}:{sws+3}], s96 offen offset:{4*k}\n s_nop 1")
    def __call__(self, text):
        for l in text.split("\n"):
            l = l.strip()
            if not l: continue
            m = re.match(r"s_cselect_b32 (s\d+), (\d\w*), (\d\w*)$", l)
            if m and int(m.group(2), 0) > 64 and int(m.group(3), 0) > 64:
                self.lines.append(f"s_mov_b32 {m.group(1)}, {m.group(3)}")
                self.lines.append(f"s_cselect_b32 {m.group(1)}, {m.group(2)}, {m.group(1)}")
                continue
            self.lines.append(l)
    def finish(self):
        out = []
        def required(hist, c):
            pad = 0; dist = 0
            for p in reversed(hist):
                if dist > 24: break
                n = need(p, c)
                if n > dist: pad = max(pad, n - dist)
                dist += p.states()
            return pad
        npad = 0
        for l in self.lines:
            c = Ins(l)
            if c.kind != "none":
                pad = required(out[-40:], c)
                while pad > 0:
                    k = min(pad, 16)
                    out.append(Ins(f"s_nop {k-1}")); npad += 1
                    pad -= k
            out.append(c)
        lab = {c.text[:-1]: i for i, c in enumerate(out) if c.label}
        for i, c in enumerate(out):
            if c.op.startswith(("s_cbranch", "s_branch")):
                tgt = lab[c.text.split()[1]]
                hist = out[max(0, i - 40): i + 1]
                for c2 in out[tgt: tgt + 30]:
                    if c2.kind != "none":
                        pad = required(hist, c2)
                        if pad: raise RuntimeError(f"hazard across branch '{c.text}' at '{c2.text}' needs {pad} more")
                    hist = hist + [c2]
                    if c2.op in ("s_branch", "s_endpgm"): break
        self.npad = npad
        return "\n".join(("" if (c.label or c.directive) else "    ") + c.text for c in out) + "\n"

def v(a, n=1): return f"v{a}" if n == 1 else f"v[{a}:{a+n-1}]"
def a_(a, n=1): return f"a{a}" if n == 1 else f"a[{a}:{a+n-1}]"
def s(a, n=1): return f"s{a}" if n == 1 else f"s[{a}:{a+n-1}]"

def kernel_head(name):
    return f".text\n.globl {name}\n.p2align 8\n.type {name},@function\n{name}:\n"
def kernel_desc(name, nvgpr, nagpr=0, nsgpr=96):
    if DIAG: nsgpr = 100
    acc = (nvgpr + 3) // 4 * 4
    tot = acc + nagpr if nagpr else nvgpr
    return f""".section .rodata,"a"
.p2align 6
.amdhsa_kernel {name}
  .amdhsa_next_free_vgpr {tot}
  .amdhsa_next_free_sgpr {nsgpr}
  .amdhsa_accum_offset {acc}
  .amdhsa_group_segment_fixed_size 0
  .amdhsa_kernarg_size 80
  .amdhsa_user_sgpr_count 2
  .amdhsa_user_sgpr_kernarg_segment_ptr 1
  .amdhsa_system_sgpr_workgroup_id_x 1
.end_amdhsa_kernel
"""
```

```python
from asmlib import *
from layout import *

def srd(A, d, lo, hi, size):
    A(f"s_mov_b32 s{d}, s{lo}\n s_and_b32 s{d+1}, s{hi}, 0xffff\n s_mov_b32 s{d+2}, {size}\n s_mov_b32 s{d+3}, 0x20000")

class VM:
    def __init__(self, A): self.A = A; self.ops = []; self.done = 0
    def issue(self, text, tag=None):
        self.A(text); self.ops.append(tag)
        assert len(self.ops) - self.done <= 63, "vmcnt overflow"
    def count(self, tag):
        idx = max(i for i, t in enumerate(self.ops) if t == tag)
        return len(self.ops) - 1 - idx, idx + 1
    def wait(self, tag):
        n, d = self.count(tag)
        if d > self.done:
            self.A(f"s_waitcnt vmcnt({n})"); self.done = d
    def fork(self):
        o = VM(self.A); o.ops = list(self.ops); o.done = self.done; return o

def gen_k1(name, WT="sc1", PRE=4):
    A = Asm(0); vm0 = VM(A)
    X = 32; ACC = 176
    VM_ = 4; VS = 7; VD = 10
    NM = 15; RS = 16
    T = 20
    SX, SW, SO = 12, 16, 20
    SLOT = 20480; NSLOT = 7
    BIG = 0x7ff00000; XB = 4*SLOT
    A(f"""
    s_cmp_ge_u32 s2, 192
    s_cbranch_scc1 {name}_end
    s_load_dwordx4 s[4:7], s[0:1], 0
    s_load_dwordx2 s[8:9], s[0:1], 72
    v_lshrrev_b32 v1, 6, v0
    v_and_b32 v2, 63, v0
    v_readfirstlane_b32 s24, v1
    s_bfe_u32 s25, s2, 0x20001
    s_lshl_b32 s25, s25, 2
    s_bfe_u32 s26, s2, 0x20003
    s_add_u32 s25, s25, s26
    s_and_b32 s26, s2, 1
    s_mul_i32 s26, s26, 6
    s_lshr_b32 s27, s2, 5
    s_add_u32 s26, s26, s27
    s_lshl_b32 s29, s25, 2
    s_add_u32 s29, s29, s24
    v_and_b32 v1, 31, v2
    s_lshl_b32 s30, s29, 5
    v_lshrrev_b32 v{T}, 3, v2
    v_add_u32 v3, s30, v{T}
    v_mul_u32_u24 v3, 1152, v3
    v_lshrrev_b32 v{T}, 4, v2
    v_and_b32 v{T+1}, 7, v2
    v_xor_b32 v{T}, v{T}, v{T+1}
    v_lshl_add_u32 v3, v{T}, 4, v3
    v_xor_b32 v17, 64, v3
    s_lshl_b32 s51, s24, 14
    s_add_u32 s51, s51, {XB}
    s_waitcnt lgkmcnt(0)
    """)
    A.stamp(0)
    srd(A, SX, 4, 5, 2359296)
    def xdma(g):
        for p in range(4):
            A(f"s_mov_b32 s33, {p*8*1152 + g*128}\n s_add_u32 m0, s51, {(g%4)*4096 + p*1024}")
            vm0.issue(f"buffer_load_dwordx4 v{17 if p&1 else 3}, {s(SX,4)}, s33 offen lds", ("x", g))
    for g in range(4): xdma(g)
    srd(A, SW, 6, 7, 1990656)
    srd(A, SO, 8, 9, WS_USED)
    A(f"""
    s_mul_i32 s30, s24, {16*3456}
    s_mul_i32 s31, s26, 288
    s_add_u32 s30, s30, s31
    s_mul_i32 s32, s24, 5120
    s_cmp_ge_u32 s26, 8
    s_cselect_b32 s34, 64, 72
    s_cselect_b32 s35, 32, 40
    s_cselect_b32 s36, 16, 72
    s_cselect_b32 s37, 256, 32
    s_cselect_b32 s41, 18, 20
    s_cselect_b32 s42, 3, 4
    v_mov_b32 v{T+5}, {BIG}
    """)
    for i in range(5):
        A(f"""
        v_add_u32 v{T}, {64*i}, v2
        v_mul_u32_u24 v{T+1}, 3277, v{T}
        v_lshrrev_b32 v{T+1}, 16, v{T+1}
        v_mul_u32_u24 v{T+2}, 20, v{T+1}
        v_sub_u32 v{T}, v{T}, v{T+2}
        v_lshrrev_b32 v{T+2}, 2, v{T}
        v_mul_lo_u32 v{T+2}, v{T+2}, s34
        v_bfe_u32 v{T+3}, v{T}, 1, 1
        v_mul_lo_u32 v{T+3}, v{T+3}, s35
        v_add_u32 v{T+2}, v{T+2}, v{T+3}
        v_and_b32 v{T+3}, 1, v{T}
        v_lshl_add_u32 v{T+2}, v{T+3}, 4, v{T+2}
        v_and_b32 v{T+3}, 3, v{T}
        v_mul_lo_u32 v{T+3}, v{T+3}, s36
        v_add_u32 v{T+3}, s37, v{T+3}
        v_cmp_gt_u32 vcc, 16, v{T}
        v_cndmask_b32 v{T+2}, v{T+3}, v{T+2}, vcc
        v_mul_u32_u24 v{T+1}, 3456, v{T+1}
        v_add3_u32 v{T+2}, v{T+2}, v{T+1}, s30
        v_cmp_gt_u32 vcc, s41, v{T}
        v_cndmask_b32 v{VD+i}, v{T+5}, v{T+2}, vcc
        """)
    def dma(vm, stage, i):
        A(f"s_mov_b32 s33, {stage*64*3456}\n s_add_u32 m0, s32, {(stage%NSLOT)*SLOT + i*1024}")
        vm.issue(f"buffer_load_dwordx4 v{VD+i}, {s(SW,4)}, s33 offen lds", ("W", stage))
    for i in range(5): dma(vm0, 0, i)
    A(f"""
    v_and_b32 v{T}, 15, v2
    v_lshrrev_b32 v{T+1}, 2, v{T}
    v_lshrrev_b32 v{T+2}, 5, v2
    v_lshl_add_u32 v{T+1}, v{T+2}, 3, v{T+1}
    v_mul_u32_u24 v{T+1}, 320, v{T+1}
    v_and_b32 v{T}, 3, v{T}
    v_bfe_u32 v{T+2}, v2, 4, 1
    v_lshl_add_u32 v{T+3}, v{T+2}, 5, v{T+1}
    v_lshl_add_u32 v{VM_}, v{T}, 3, v{T+3}
    v_lshlrev_b32 v{T}, s42, v{T}
    v_add3_u32 v{VS}, v{T}, v{T+1}, 64
    v_add_u32 v{VS}, 192, v{VS}
    """)
    for k in range(1, 3):
        A(f"v_add_u32 v{VM_+k}, {3*SLOT*k}, v{VM_}\n v_add_u32 v{VS+k}, {3*SLOT*k}, v{VS}")
    A(f"s_mov_b32 s38, 0x3f803f80\n s_mov_b32 s39, 0xffff0000")
    for k in range(4): A(f"v_mov_b32 v{T+k}, 0")
    A(f"""
    v_bfe_u32 v{T+4}, v2, 1, 3
    v_lshrrev_b32 v{T+5}, 5, v2
    v_xor_b32 v{T+4}, v{T+4}, v{T+5}
    v_lshlrev_b32 v{T+4}, 4, v{T+4}
    v_lshl_add_u32 v{T+4}, v1, 7, v{T+4}
    v_add_u32 v{T+4}, s51, v{T+4}
    v_xor_b32 v{T+5}, 32, v{T+4}
    v_xor_b32 v{T+6}, 64, v{T+4}
    v_xor_b32 v{T+7}, 96, v{T+4}
    """)
    wq = [(sg, i) for sg in range(1, PRE) for i in range(5)]
    for g in range(9):
        vm0.wait(("x", g))
        for kk in range(4): A(f"ds_read_b128 {v(X+16*g+4*kk,4)}, v{T+4+kk} offset:{(g%4)*4096}")
        A("s_waitcnt lgkmcnt(0)")
        if g + 4 < 9: xdma(g + 4)
        if g >= 4:
            for _ in range(3):
                if wq: dma(vm0, *wq.pop(0))
        for r in range(16):
            A(f"v_dot2c_f32_bf16 v{T+(r&1)}, s38, v{X+16*g+r}")
            A(f"v_dot2c_f32_bf16 v{T+2+(r&1)}, v{X+16*g+r}, v{X+16*g+r}")
    A(f"""
    s_cmp_lt_u32 s26, 4
    s_cselect_b32 s41, {hex(f2u(QSCALE))}, 1.0
    v_add_f32 v{T}, v{T}, v{T+1}
    v_add_f32 v{T+2}, v{T+2}, v{T+3}
    v_mov_b32 v{T+1}, v{T}
    v_mov_b32 v{T+3}, v{T+2}
    v_permlane32_swap_b32 v{T}, v{T+1}
    v_permlane32_swap_b32 v{T+2}, v{T+3}
    v_add_f32 v{T}, v{T}, v{T+1}
    v_add_f32 v{T+2}, v{T+2}, v{T+3}
    v_mul_f32 v{NM}, {hex(f2u(-1.0/576))}, v{T}
    v_mul_f32 v{T+2}, {hex(f2u(1.0/576))}, v{T+2}
    v_fma_f32 v{T+2}, -v{NM}, v{NM}, v{T+2}
    v_max_f32 v{T+2}, 0, v{T+2}
    v_add_f32 v{T+2}, {hex(f2u(1e-5))}, v{T+2}
    v_rsq_f32 v{RS}, v{T+2}
    v_mul_f32 v{RS}, s41, v{RS}
    v_mul_f32 v{NM}, v{NM}, v{RS}
    """)
    A.stamp(1)
    def center(st):
        o = []
        for r in range(4):
            x = X + 4*st + r; t = T + 2*r
            o += [f"v_lshlrev_b32 v{t}, 16, v{x}", f"v_and_b32 v{t+1}, s39, v{x}",
                  f"v_fma_f32 v{t}, v{t}, v{RS}, v{NM}", f"v_fma_f32 v{t+1}, v{t+1}, v{RS}, v{NM}",
                  f"v_cvt_pk_bf16_f32 v{x}, v{t}, v{t+1}"]
        return o
    for l in center(0): A(l)
    vm0.wait(("W", 0)); A("s_barrier")
    A.stamp(2)
    A(f"s_cmp_ge_u32 s26, 8\n s_cbranch_scc1 {name}_vmain")
    def mainloop(isv):
        vm = vm0.fork()
        def reads(st, t):
            slot = (st // 4) % NSLOT
            off = (slot % 3) * SLOT + (st % 4) * 16 * 320
            if t < 4: ad = VM_ + slot // 3; off += 64*t
            else: ad = VS + slot // 3
            return [f"ds_read_b64_tr_b16 {a_(4*t,2)}, v{ad} offset:{off}",
                    f"ds_read_b64_tr_b16 {a_(4*t+2,2)}, v{ad} offset:{off+4*320}"]
        for t in range(5):
            for l in reads(0, t): A(l)
        dm = [(sg, i) for sg in range(PRE, 9) for i in range(5)]
        for st in range(36):
            fill = center(st + 1) if st < 35 else []
            for t in range(5):
                if st < 35: A("s_waitcnt lgkmcnt(8)")
                else: A(f"s_waitcnt lgkmcnt({8-2*t})")
                c = v(ACC+16*t, 16) if st else "0"
                if isv: A(f"v_mfma_f32_32x32x16_bf16 {v(ACC+16*t,16)}, {v(X+4*st,4)}, {a_(4*t,4)}, {c}")
                else:   A(f"v_mfma_f32_32x32x16_bf16 {v(ACC+16*t,16)}, {a_(4*t,4)}, {v(X+4*st,4)}, {c}")
                if t == 0 and st % 4 == 3 and st < 35:
                    vm.wait(("W", st // 4 + 1)); A("s_barrier")
                if st < 35:
                    for l in reads(st + 1, t): A(l)
                for l in fill[:4]: A(l)
                fill = fill[4:]
                if dm and t in (1, 3) and (dm[0][0] < NSLOT or st >= 4*(dm[0][0]-NSLOT+1) + 3):
                    dma(vm, *dm.pop(0))
        assert not dm
        A.stamp(3)
    mainloop(False)
    A(f"""
    s_cmp_ge_u32 s26, 4
    s_cselect_b32 s42, {KV_HEAD}, 65536
    s_cselect_b32 s43, {KV_HEAD}, 8192
    s_cselect_b32 s50, 4, 2
    s_lshr_b32 s44, s29, 3
    s_mul_i32 s44, s44, {KV_CHUNK}
    s_add_u32 s44, s44, {KV_OFF}
    s_and_b32 s45, s29, 7
    s_lshl_b32 s45, s45, 10
    s_add_u32 s45, s45, s44
    s_and_b32 s46, s29, 1
    s_lshl_b32 s46, s46, 9
    s_add_u32 s44, s44, s46
    s_lshr_b32 s46, s29, 1
    s_and_b32 s46, s46, 3
    s_lshl_b32 s46, s46, 2
    s_add_u32 s44, s44, s46
    s_add_u32 s44, s44, 8192
    s_lshl_b32 s46, s29, 10
    s_add_u32 s46, s46, {QF_OFF}
    s_lshl_b32 s47, s29, 7
    s_add_u32 s47, s47, {QT_OFF}
    s_cmp_ge_u32 s26, 4
    s_cselect_b32 s45, s45, s46
    s_cselect_b32 s44, s44, s47
    s_and_b32 s46, s26, 3
    s_lshl_b32 s46, s46, 3
    s_mul_i32 s47, s46, s43
    s_add_u32 s44, s44, s47
    s_mul_i32 s47, s46, s42
    s_add_u32 s45, s45, s47
    v_lshlrev_b32 v3, 4, v2
    v_lshlrev_b32 v{T}, s50, v1
    v_lshrrev_b32 v{T+1}, 5, v2
    s_lshl_b32 s46, s43, 1
    v_mul_lo_u32 v{T+1}, v{T+1}, s46
    v_add_u32 v{T}, v{T}, v{T+1}
    s_mul_i32 s47, s43, 3
    """)
    for hh in range(9):
        b = ACC + 8*hh
        tmp = X + hh * 4
        for r in range(4): A(f"v_cvt_pk_bf16_f32 v{tmp+r}, v{b+2*r}, v{b+2*r+1}")
        if hh < 8:
            A(f"buffer_store_dwordx4 {v(tmp,4)}, v3, {s(SO,4)}, s45 offen {WT}\n s_add_u32 s45, s45, s42")
        else:
            for a in range(2):
                A(f"buffer_store_dword v{tmp+2*a}, v{T}, {s(SO,4)}, s44 offen\n s_add_u32 s44, s44, s43")
                A(f"buffer_store_dword v{tmp+2*a+1}, v{T}, {s(SO,4)}, s44 offen\n s_add_u32 s44, s44, s47")
    A(f"s_branch {name}_fl")
    A(f"{name}_vmain:")
    mainloop(True)
    A(f"""
    v_lshrrev_b32 v{T+1}, 5, v2
    s_lshr_b32 s44, s29, 3
    s_mul_i32 s44, s44, {KV_CHUNK}
    s_and_b32 s45, s29, 7
    s_mul_i32 s45, s45, {2*VFRAG}
    s_add_u32 s44, s44, s45
    s_add_u32 s44, s44, {KV_OFF + 9216}
    s_sub_u32 s46, s26, 8
    s_mul_i32 s45, s46, {8*KV_HEAD}
    s_add_u32 s44, s44, s45
    s_mov_b32 s47, {KV_HEAD}
    v_mul_u32_u24 v{T+1}, {19*16}, v{T+1}
    v_lshrrev_b32 v{T+2}, 2, v1
    v_mul_lo_u32 v{T+2}, v{T+2}, s47
    v_and_b32 v{T+3}, 3, v1
    v_mul_u32_u24 v{T+3}, {19*16}, v{T+3}
    v_add_u32 v{T+2}, v{T+2}, v{T+3}
    v_mov_b32 v{X+48}, s38
    v_mov_b32 v{X+49}, s38
    v_mov_b32 v{X+50}, s38
    v_mov_b32 v{X+51}, s38
    buffer_store_dwordx4 {v(X+48,4)}, v{T+2}, {s(SO,4)}, s44 offen offset:{18*16}
    v_mov_b32 v{T+5}, {BIG}
    v_cmp_gt_u32 vcc, 16, v1
    """)
    for t in range(5):
        ad = VD + t
        A(f"""
        v_add_u32 v{T+2}, {32*t}, v1
        v_mul_u32_u24 v{T+3}, 3641, v{T+2}
        v_lshrrev_b32 v{T+3}, 16, v{T+3}
        v_mul_u32_u24 v{T+4}, 18, v{T+3}
        v_sub_u32 v{T+2}, v{T+2}, v{T+4}
        v_mul_lo_u32 v{T+3}, v{T+3}, s47
        v_lshl_add_u32 v{T+2}, v{T+2}, 4, v{T+1}
        v_add_u32 v{ad}, v{T+2}, v{T+3}
        """)
        if t == 4: A(f"v_cndmask_b32 v{ad}, v{T+5}, v{ad}, vcc")
        for half in range(2):
            b = ACC + 16*t + 8*half
            tmp = X + (2*t + half) * 4
            for r in range(4): A(f"v_cvt_pk_bf16_f32 v{tmp+r}, v{b+2*r}, v{b+2*r+1}")
            A(f"buffer_store_dwordx4 {v(tmp,4)}, v{ad}, {s(SO,4)}, s44 offen offset:{VFRAG*half}")
    A(f"{name}_fl:")
    A.flush(SO)
    A(f"{name}_end:\n s_endpgm")
    body = A.finish()
    launch = (name, 192, 256, 147456)
    return launch, kernel_head(name) + body, kernel_desc(name, 256, 24, 64)
```

```python
from asmlib import *
from layout import *
from k1 import srd, VM

WT = "sc1"
def wsetup(A, name, T, WA, WB, WS_, WM, SSRC, SWD):
    BIG = 0x7ff00000
    A(f"""
    s_lshl_b32 s31, s2, 3
    s_add_u32 s31, s31, s24
    s_mov_b32 s59, s31
    v_lshrrev_b32 v{T+5}, 5, v2
    s_cmp_lt_u32 s31, 1296
    s_cbranch_scc0 {name}_w1
    s_cmp_ge_u32 s31, 648
    s_cselect_b32 s{SSRC}, s54, s52
    s_cselect_b32 s{SSRC+1}, s55, s53
    s_cselect_b32 s32, 648, 0
    s_cselect_b32 s33, 128, 0
    s_mov_b32 s{SSRC+2}, 5308416
    s_sub_u32 s31, s31, s32
    s_mul_i32 s32, s31, 3641
    s_lshr_b32 s32, s32, 16
    s_mul_i32 s34, s32, 18
    s_sub_u32 s31, s31, s34
    s_lshr_b32 s34, s32, 2
    s_lshl_b32 s34, s34, 6
    s_and_b32 s35, s32, 3
    s_lshl_b32 s35, s35, 3
    s_add_u32 s34, s34, s35
    s_mul_i32 s34, s34, 9216
    s_lshl_b32 s35, s31, 9
    s_add_u32 s34, s34, s35
    v_mul_u32_u24 v{T+1}, {32*9216}, v{T+5}
    v_lshl_add_u32 v{T+1}, v1, 4, v{T+1}
    v_add_u32 v{T+1}, s34, v{T+1}
    s_mul_i32 s34, s31, {16*36}
    s_add_u32 s34, s34, s32
    s_lshl_b32 s34, s34, 10
    s_add_u32 s34, s34, s33
    s_add_u32 s34, s34, {WGU_OFF}
    v_lshrrev_b32 v{T+2}, 4, v1
    v_mul_u32_u24 v{T+2}, {8*36*1024}, v{T+2}
    v_lshl_add_u32 v{T+2}, v{T+5}, 9, v{T+2}
    v_bfe_u32 v{T+3}, v1, 3, 1
    v_lshl_add_u32 v{T+2}, v{T+3}, 8, v{T+2}
    v_and_b32 v{T+3}, 7, v1
    v_lshl_add_u32 v{T+2}, v{T+3}, 4, v{T+2}
    v_add_u32 v{WA}, s34, v{T+2}
    s_mov_b32 s60, 9216
    s_mov_b32 s61, {2*9216}
    s_mov_b32 s62, {4*9216}
    s_mov_b32 s63, {36*1024}
    s_mov_b32 s58, {4*36*1024}
    s_branch {name}_wload
    {name}_w1:
    s_cmp_lt_u32 s31, 1872
    s_cbranch_scc0 {name}_w2
    s_mov_b32 s{SSRC}, s56
    s_mov_b32 s{SSRC+1}, s57
    s_mov_b32 s{SSRC+2}, 5308416
    s_sub_u32 s31, s31, 1296
    s_lshr_b32 s32, s31, 4
    s_lshl_b32 s32, s32, 7
    s_bfe_u32 s33, s31, 0x30001
    s_add_u32 s32, s32, s33
    s_and_b32 s33, s31, 1
    s_lshl_b32 s33, s33, 5
    s_add_u32 s32, s32, s33
    s_mul_i32 s32, s32, 1152
    v_add_u32 v{T+1}, s32, v3
    s_lshr_b32 s32, s31, 2
    s_mul_i32 s32, s32, 9216
    s_and_b32 s33, s31, 3
    s_lshl_b32 s33, s33, 8
    s_add_u32 s32, s32, s33
    s_add_u32 s32, s32, {WD_OFF}
    v_lshrrev_b32 v{T+2}, 4, v2
    v_mul_u32_u24 v{T+2}, {144*9216}, v{T+2}
    v_and_b32 v{T+3}, 15, v2
    v_lshl_add_u32 v{T+2}, v{T+3}, 4, v{T+2}
    v_add_u32 v{WA}, s32, v{T+2}
    s_mov_b32 s60, {8*1152}
    s_mov_b32 s61, {16*1152}
    s_mov_b32 s62, {64*1152}
    s_mov_b32 s63, 1024
    s_mov_b32 s58, 4096
    s_branch {name}_wload
    {name}_w2:
    s_mov_b32 s{SSRC}, s4
    s_mov_b32 s{SSRC+1}, s5
    s_mov_b32 s{SSRC+2}, 663552
    s_sub_u32 s33, s31, 1872
    s_lshl_b32 s33, s33, 6
    v_add_u32 v{T}, s33, v2
    v_lshrrev_b32 v{T+1}, 3, v{T}
    v_mul_u32_u24 v{T+1}, 7282, v{T+1}
    v_lshrrev_b32 v{T+1}, 16, v{T+1}
    v_mul_u32_u24 v{T+2}, 72, v{T+1}
    v_sub_u32 v{T}, v{T}, v{T+2}
    v_lshrrev_b32 v{T+2}, 1, v{T+1}
    v_and_b32 v{T+3}, 1, v{T+1}
    v_lshrrev_b32 v{T+4}, 3, v{T}
    v_mul_u32_u24 v{T+4}, 36, v{T+4}
    v_add_u32 v{T+4}, v{T+4}, v{T+2}
    v_lshlrev_b32 v{T+4}, 11, v{T+4}
    v_lshl_add_u32 v{T+4}, v{T+3}, 9, v{T+4}
    v_and_b32 v{T+5}, 7, v{T}
    v_lshl_add_u32 v{T+4}, v{T+5}, 4, v{T+4}
    s_cmp_ge_u32 s31, 1953
    s_cselect_b32 s32, {BIG}, {WOF_OFF}
    v_add_u32 v{WA}, s32, v{T+4}
    v_mul_u32_u24 v{T+4}, 18, v{T+2}
    v_lshl_add_u32 v{T+4}, v{T+3}, 2, v{T+4}
    s_mov_b32 s60, 1152
    s_mov_b32 s61, {2*1152}
    s_mov_b32 s62, {8*1152}
    s_mov_b32 s63, 128
    s_mov_b32 s58, 1024
    s_cmp_ge_u32 s31, 1944
    s_cbranch_scc0 {name}_w3
    v_subrev_u32 v{T+4}, 64, v{T+1}
    v_mul_u32_u24 v{T+4}, 72, v{T+4}
    v_add_u32 v{T+4}, 16, v{T+4}
    s_mov_b32 s61, {18*1152}
    s_mov_b32 s62, {36*1152}
    {name}_w3:
    v_mul_u32_u24 v{T+4}, 1152, v{T+4}
    v_lshl_add_u32 v{T+1}, v{T}, 4, v{T+4}
    {name}_wload:
    s_and_b32 s{SSRC+1}, s{SSRC+1}, 0xffff
    s_mov_b32 s{SSRC+3}, 0x20000
    s_mov_b32 s40, 0
    s_mov_b32 s41, s60
    s_mov_b32 s42, s61
    s_add_u32 s43, s60, s61
    s_mov_b32 s44, s62
    s_add_u32 s45, s62, s41
    s_add_u32 s46, s62, s42
    s_add_u32 s47, s62, s43
    v_mov_b32 v{WS_}, v{T+1}
    """)
    A(f"""
    s_mov_b32 s{SWD}, s56
    s_and_b32 s{SWD+1}, s57, 0xffff
    s_cmp_lt_u32 s59, 576
    s_cselect_b32 s{SWD+2}, 5308416, 0
    s_cselect_b32 s34, {WD_OFF + 8192}, {BIG}
    s_mov_b32 s{SWD+3}, 0x20000
    s_lshr_b32 s32, s59, 4
    s_lshl_b32 s32, s32, 7
    s_bfe_u32 s33, s59, 0x30001
    s_add_u32 s32, s32, s33
    s_and_b32 s33, s59, 1
    s_lshl_b32 s33, s33, 5
    s_add_u32 s32, s32, s33
    s_mul_i32 s32, s32, 1152
    s_add_u32 s32, s32, 1024
    v_lshl_add_u32 v{WM}, v2, 1, s32
    s_lshr_b32 s32, s59, 2
    s_mul_i32 s32, s32, 9216
    s_and_b32 s33, s59, 3
    s_lshl_b32 s33, s33, 8
    s_add_u32 s32, s32, s33
    s_add_u32 s32, s32, s34
    v_lshrrev_b32 v{T+2}, 4, v2
    v_mul_u32_u24 v{T+2}, {144*9216}, v{T+2}
    v_and_b32 v{T+3}, 15, v2
    v_lshl_add_u32 v{T+2}, v{T+3}, 4, v{T+2}
    v_add_u32 v{WB}, s32, v{T+2}
    """)

def gen_k2(name, force_fallback=False, PRIO={0:3,18:2,26:1,30:0}, VONES=False, ABL=()):
    A = Asm(1); vm = VM(A); vm.ops = ['q', 'q']
    Q = 4; QT = 8; KA = 232; VA = 235; WA = 14; WB = 15; WS_ = 12; WM = 13
    NEGM = 16; O = 32; S = [48, 80]; P = 112; KF = 128; KT = [136, 140]; VF = 144
    RAW = 160; T = 192; MINI = 224
    SKV, SWS, SSRC, SWD = 12, 16, 20, 48
    A(f"""
    s_cmp_ge_u32 s2, 256
    s_cbranch_scc1 {name}_end
    s_load_dwordx2 s[8:9], s[0:1], 72
    s_load_dwordx2 s[4:5], s[0:1], 16
    s_load_dwordx4 s[52:55], s[0:1], 32
    s_load_dwordx2 s[56:57], s[0:1], 48
    v_lshrrev_b32 v1, 6, v0
    v_and_b32 v2, 63, v0
    v_readfirstlane_b32 s24, v1
    s_and_b32 s25, s2, 7
    s_lshl_b32 s25, s25, 2
    s_lshr_b32 s26, s2, 3
    s_and_b32 s26, s26, 3
    s_add_u32 s25, s25, s26
    s_lshr_b32 s26, s2, 5
    s_lshl_b32 s26, s26, 3
    s_add_u32 s26, s26, s24
    v_lshlrev_b32 v3, 4, v2
    v_and_b32 v1, 31, v2
    v_lshlrev_b32 v{T}, 2, v1
    s_lshl_b32 s27, s25, 16
    s_lshl_b32 s28, s26, 10
    s_add_u32 s27, s27, s28
    s_add_u32 s27, s27, {QF_OFF}
    s_lshl_b32 s28, s25, 13
    s_lshl_b32 s29, s26, 7
    s_add_u32 s28, s28, s29
    s_add_u32 s28, s28, {QT_OFF}
    s_mul_i32 s29, s25, {KV_HEAD}
    s_add_u32 s29, s29, {KV_OFF}
    s_waitcnt lgkmcnt(0)
    """)
    A.stamp(0)
    srd(A, SWS, 8, 9, WS_USED)
    A(f"""
    buffer_load_dwordx4 {v(Q,4)}, v3, {s(SWS,4)}, s27 offen
    buffer_load_dword v{QT}, v{T}, {s(SWS,4)}, s28 offen
    s_add_u32 s{SKV}, s8, s29
    s_addc_u32 s{SKV+1}, s9, 0
    s_and_b32 s{SKV+1}, s{SKV+1}, 0xffff
    s_mov_b32 s{SKV+2}, {KV_HEAD}
    s_mov_b32 s{SKV+3}, 0x20000
    s_lshl_b32 s30, s24, 10
    """)
    def kvdma(j):
        A(f"s_add_u32 s31, s30, {j*8192}\n s_mov_b32 m0, s31")
        vm.issue(f"buffer_load_dwordx4 v3, {s(SKV,4)}, s31 offen lds", ("kv", j))
    for j in range(6): kvdma(j)
    wsetup(A, name, T, WA, WB, WS_, WM, SSRC, SWD)
    A(f"""
    v_mov_b32 v{KA}, v3
    v_mov_b32 v{T}, 18
    v_cmp_gt_u32 vcc, 18, v1
    v_cndmask_b32 v{T}, v{T}, v1, vcc
    v_subrev_u32 v{T+1}, 20, v1
    v_cmp_gt_u32 vcc, 8, v{T+1}
    {'s_nop 0' if VONES else f'v_cndmask_b32 v{T}, v{T}, 0, vcc'}
    v_lshrrev_b32 v{T+1}, 5, v2
    v_mul_u32_u24 v{T+1}, 304, v{T+1}
    v_lshl_add_u32 v{VA}, v{T}, 4, v{T+1}
    v_add_u32 v{KA+1}, 65536, v{KA}
    v_add_u32 v{KA+2}, 131072, v{KA}
    v_add_u32 v{VA+1}, 65536, v{VA}
    v_add_u32 v{VA+2}, 131072, v{VA}
    v_mov_b32 v{QT+1}, 0
    v_mov_b32 v{QT+2}, 0
    """)
    for r in range(16): A(f"v_mov_b32 v{O+r}, 0")
    def koff(u, i): return (u >> 2) * KV_CHUNK + ((u & 3) * 2 + i) * 1024
    def voff(u, q): return (u >> 2) * KV_CHUNK + 9216 + ((u & 3) * 4 + q) * VFRAG
    def rdK(u, i): return f"ds_read_b128 {v(KF+4*i,4)}, v{KA+(koff(u,i)>>16)} offset:{koff(u,i)&65535}"
    def rdV(u, q): return f"ds_read_b128 {v(VF+4*q,4)}, v{VA+(voff(u,q)>>16)} offset:{voff(u,q)&65535}"
    def rdT(c, b): return f"ds_read_b128 {v(KT[b],4)}, v{KA+((c*KV_CHUNK+8192)>>16)} offset:{(c*KV_CHUNK+8192)&65535}"
    def mM(buf, i, c): return f"v_mfma_f32_32x32x16_bf16 {v(S[buf]+16*i,16)}, {v(KF+4*i,4)}, {v(Q,4)}, {c}"
    def mT(buf, u, kt): return f"v_mfma_f32_32x32x4_2b_bf16 {v(S[buf],32)}, {v(kt+2*((u&3)>>1),2)}, {v(QT+2*(u&1),2)}, {v(S[buf],32)}"
    def mPV(q): return f"v_mfma_f32_32x32x16_bf16 {v(O,16)}, {v(VF+4*q,4)}, {v(P+4*q,4)}, {v(O,16)}"
    vm.wait(("kv", 3)); A(f"v_mov_b32 v{QT+3}, v{QT}\n s_barrier")
    A.stamp(1)
    A(rdK(0, 0)); A(rdK(0, 1)); A(rdT(0, 0))
    for q in range(4): A(rdV(0, q))
    A("s_waitcnt lgkmcnt(4)")
    A(mM(1, 0, "0")); A(mM(1, 1, "0")); A(mT(1, 0, KT[0]))
    b = S[1]
    A(f"v_max3_f32 v{T}, v{b}, v{b+1}, v{b+2}\n v_max3_f32 v{T+1}, v{b+3}, v{b+4}, v{b+5}")
    for r in range(6, 30, 4):
        A(f"v_max3_f32 v{T}, v{T}, v{b+r}, v{b+r+1}\n v_max3_f32 v{T+1}, v{T+1}, v{b+r+2}, v{b+r+3}")
    A(f"""
    v_max3_f32 v{T}, v{T}, v{b+30}, v{b+31}
    v_max_f32 v{T}, v{T}, v{T+1}
    v_mov_b32 v{T+1}, v{T}
    v_permlane32_swap_b32 v{T}, v{T+1}
    v_max_f32 v{T}, v{T}, v{T+1}
    """)
    for r in range(16): A(f"v_sub_f32 v{NEGM+r}, 0, v{T}")
    A(mM(0, 0, v(NEGM, 16))); A(rdK(1, 0)); A(mM(0, 1, v(NEGM, 16))); A(rdK(1, 1)); A(mT(0, 0, KT[0]))
    A("s_waitcnt lgkmcnt(0)\n s_mov_b32 s37, 0x05040100\n s_mov_b32 s38, 0x07060302")
    A.stamp(2)
    kvq = list(range(6, 19))
    def slot(u, k):
        if k < 2 and kvq: kvdma(kvq.pop(0)); return
        if k == 2 and 3 <= u < 19:
            j = (u - 3) >> 1
            if (u - 3) & 1 == 0:
                vm.issue(f"buffer_load_dwordx4 {v(RAW+4*j,4)}, v{WS_}, {s(SSRC,4)}, s{40+j} offen", "w")
            else:
                A(f"s_mov_b32 s33, {(64*(j>>2)+8*(j&3))*1152}")
                vm.issue(f"buffer_load_ushort v{MINI+j}, v{WM}, {s(SWD,4)}, s33 offen", "w")
        if k == 1 and 8 <= u < 13:
            if u == 8:
                for r in range(4): A(f"v_mov_b32 v{T+8+r}, -1")
                A(f"s_mul_i32 s39, s59, 5120\n s_add_u32 s39, s39, {PART_OFF}")
            vm.issue(f"buffer_store_dwordx4 {v(T+8,4)}, v3, {s(SWS,4)}, s39 offen {WT}", "st")
            A("s_add_u32 s39, s39, 1024")
        if k == 2 and 22 <= u < 31:
            j = u - 22
            vm.wait("w")
            if j < 8:
                for r in range(4):
                    A(f"v_perm_b32 v{T+4*(j&1)+r}, v{RAW+8*r+4+(j>>1)}, v{RAW+8*r+(j>>1)}, s{37+(j&1)}")
                A(f"s_mul_i32 s33, s63, {j&3}")
                if j >= 4: A("s_add_u32 s33, s33, s58")
                vm.issue(f"buffer_store_dwordx4 {v(T+4*(j&1),4)}, v{WA}, {s(SWS,4)}, s33 offen {WT}", "st")
            else:
                for r in range(4): A(f"v_lshl_or_b32 v{MINI+r}, v{MINI+2*r+1}, 16, v{MINI+2*r}")
                vm.issue(f"buffer_store_dwordx4 {v(MINI,4)}, v{WB}, {s(SWS,4)}, 0 offen {WT}", "st")
    for u in range(32):
        cur = S[u & 1]; nb = (u + 1) & 1
        if u == 4: vm.wait(("kv", 8)); A("s_barrier")
        if u == 12: vm.wait(("kv", 18)); A("s_barrier")
        if u % 4 == 0 and u: A.stamp(3 + u // 4)
        if PRIO and u in PRIO: A(f"s_setprio {PRIO[u]}")
        for q in range(4):
            val = [f"v_exp_f32 v{cur+8*q+r}, v{cur+8*q+r}" for r in range(8)]
            cv = [f"v_cvt_pk_bf16_f32 v{P+4*q+r}, v{cur+8*q+2*r}, v{cur+8*q+2*r+1}" for r in range(4)]
            seq = val[0:2] + ["PV"] + val[2:4] + [cv[0]] + val[4:6] + [cv[1], "M"] + val[6:8] + [cv[2], cv[3]]
            if q == 2: seq = val[0:2] + ["PV"] + val[2:4] + [cv[0], "M"] + val[4:6] + [cv[1]] + val[6:8] + [cv[2], cv[3]]
            for l in seq:
                if l == "PV":
                    pq = (q - 1) & 3
                    if u == 0 and q == 0: continue
                    A("s_waitcnt lgkmcnt(4)" if u < 30 else "s_waitcnt lgkmcnt(0)")
                    A(mPV(pq))
                    if q == 0: A(rdV(u, 3))
                    elif u < 31: A(rdV(u + 1, pq))
                elif l == "M":
                    if q < 2:
                        if u < 31: A(mM(nb, q, v(NEGM, 16)))
                        if u < 30: A(rdK(u + 2, q))
                        slot(u, q)
                    elif q == 2:
                        if u < 31: A(mT(nb, u + 1, KT[0]))
                    else:
                        if u % 4 == 2 and u < 30: A(rdT(u // 4 + 1, 0))
                        slot(u, 2)
                else: A(l)
    A("s_waitcnt lgkmcnt(0)")
    A.stamp(11)
    A(mPV(3))
    A(f"""
    v_cmp_gt_u32 vcc, 32, v2
    v_cndmask_b32 v{NEGM}, v{O+12}, v{O+10}, vcc
    v_mov_b32 v{NEGM+1}, {hex(f2u(-1.0 if force_fallback else 2.0**30))}
    v_cmp_nlt_f32 vcc, v{NEGM}, v{NEGM+1}
    s_cbranch_vccnz {name}_slow
    {name}_fin:
    v_cmp_gt_u32 vcc, 32, v2
    v_cndmask_b32 v{NEGM}, v{O+12}, v{O+10}, vcc
    v_rcp_f32 v{NEGM}, v{NEGM}
    s_mul_i32 s27, s26, {36*1024}
    s_add_u32 s27, s27, {OF_OFF}
    s_lshl_b32 s28, s25, 10
    s_add_u32 s28, s28, s27
    s_lshr_b32 s29, s25, 2
    s_lshl_b32 s29, s29, 9
    s_add_u32 s27, s27, s29
    s_and_b32 s29, s25, 3
    s_lshl_b32 s29, s29, 2
    s_add_u32 s27, s27, s29
    s_add_u32 s27, s27, {32*1024}
    """)
    for r in range(10): A(f"v_mul_f32 v{O+r}, v{O+r}, v{NEGM}")
    for r in range(5): A(f"v_cvt_pk_bf16_f32 v{P+r}, v{O+2*r}, v{O+2*r+1}")
    A(f"""
    buffer_store_dwordx4 {v(P,4)}, v3, {s(SWS,4)}, s28 offen
    s_and_saveexec_b64 s[34:35], vcc
    buffer_store_dword v{P+4}, v3, {s(SWS,4)}, s27 offen
    """)
    A.flush(SWS)
    A("s_endpgm")
    M = NEGM; AL = NEGM + 1; A1 = NEGM + 2; A2 = NEGM + 3; A3 = NEGM + 4; VB = NEGM + 5; X0 = NEGM + 6; X1 = NEGM + 7
    b = S[0]
    A(f"""
    {name}_slow:
    s_nop 15
    v_mov_b32 v{VB}, v{VA}
    v_mov_b32 v{M}, 0xff7fffff
    v_mov_b32 v{KT[0]+1}, 0
    s_mov_b32 s36, 0
    """)
    for r in range(16): A(f"v_mov_b32 v{O+r}, 0")
    A(f"""
    {name}_sloop:
    s_lshr_b32 s37, s36, 2
    s_mul_i32 s37, s37, {KV_CHUNK}
    s_and_b32 s38, s36, 3
    s_lshl_b32 s39, s38, 11
    s_add_u32 s39, s39, s37
    v_add_u32 v{A1}, s39, v3
    s_lshl_b32 s39, s38, 2
    s_add_u32 s39, s39, s37
    v_add_u32 v{A2}, s39, v3
    s_mul_i32 s39, s38, {4*VFRAG}
    s_add_u32 s39, s39, s37
    v_add_u32 v{A3}, s39, v{VB}
    ds_read_b128 {v(KF,4)}, v{A1}
    ds_read_b128 {v(KF+4,4)}, v{A1} offset:1024
    ds_read_b32 v{KT[0]}, v{A2} offset:8192
    """)
    for q in range(4): A(f"ds_read_b128 {v(VF+4*q,4)}, v{A3} offset:{9216+q*VFRAG}")
    A("s_waitcnt lgkmcnt(0)")
    A(mM(0, 0, "0")); A(mM(0, 1, "0")); A(mT(0, 0, KT[0]))
    A(f"v_max3_f32 v{X0}, v{M}, v{b}, v{b+1}")
    for r in range(2, 32, 2): A(f"v_max3_f32 v{X0}, v{X0}, v{b+r}, v{b+r+1}")
    A(f"""
    v_mov_b32 v{X1}, v{X0}
    v_permlane32_swap_b32 v{X0}, v{X1}
    v_max_f32 v{X0}, v{X0}, v{X1}
    v_sub_f32 v{AL}, v{M}, v{X0}
    v_exp_f32 v{AL}, v{AL}
    v_mov_b32 v{M}, v{X0}
    """)
    for r in range(16): A(f"v_mul_f32 v{O+r}, v{O+r}, v{AL}")
    for r in range(32): A(f"v_sub_f32 v{b+r}, v{b+r}, v{M}")
    for r in range(32): A(f"v_exp_f32 v{b+r}, v{b+r}")
    for r in range(16): A(f"v_cvt_pk_bf16_f32 v{P+r}, v{b+2*r}, v{b+2*r+1}")
    for q in range(4): A(mPV(q))
    A(f"""
    s_add_u32 s36, s36, 1
    s_cmp_lt_u32 s36, 32
    s_nop 12
    s_cbranch_scc1 {name}_sloop
    s_branch {name}_fin
    {name}_end:
    s_endpgm
    """)
    def drop(l):
        if "T" in ABL and "32x32x4_2b" in l: return True
        if "PV" in ABL and l.startswith(f"v_mfma_f32_32x32x16_bf16 v[{O}:"): return True
        if "M" in ABL and l.startswith("v_mfma_f32_32x32x16_bf16") and not l.startswith(f"v_mfma_f32_32x32x16_bf16 v[{O}:"): return True
        if "LDS" in ABL and l.startswith("ds_read"): return True
        if "CVT" in ABL and l.startswith("v_cvt_pk"): return True
        if "slow" in ABL and l.startswith("s_cbranch_vccnz"): return True
        return False
    A.lines = [l for l in A.lines if not drop(l)]
    body = A.finish()
    launch = (name, 256, 512, 155648)
    return launch, kernel_head(name) + body, kernel_desc(name, 240, 0, 64)
```

```python
from asmlib import *
from layout import *
from k1 import srd

def gen_k3(name, PF=False):
    A = Asm(2)
    X = 32; ACC = 176; RES = 208; WF = 224; T = 8
    SX, SWS = 12, 16
    A(f"""
    s_cmp_ge_u32 s2, 256
    s_cbranch_scc1 {name}_end
    s_load_dwordx2 s[4:5], s[0:1], 0
    s_load_dwordx2 s[8:9], s[0:1], 72
    s_cmp_ge_u32 s2, 144
    s_cbranch_scc1 {name}_aux
    v_lshrrev_b32 v1, 6, v0
    v_and_b32 v2, 63, v0
    v_readfirstlane_b32 s24, v1
    s_and_b32 s25, s2, 7
    s_lshl_b32 s25, s25, 1
    s_lshr_b32 s26, s2, 3
    s_and_b32 s27, s26, 1
    s_add_u32 s25, s25, s27
    s_lshr_b32 s26, s26, 1
    s_lshl_b32 s29, s25, 2
    s_add_u32 s29, s29, s24
    v_lshlrev_b32 v3, 4, v2
    s_mul_i32 s30, s29, {36*1024}
    s_add_u32 s31, s30, {OF_OFF}
    s_mul_i32 s32, s26, {72*1024}
    s_lshl_b32 s33, s24, 10
    s_add_u32 s32, s32, s33
    s_add_u32 s32, s32, {WOF_OFF}
    v_and_b32 v1, 31, v2
    s_lshl_b32 s34, s29, 5
    v_add_u32 v4, s34, v1
    v_mul_u32_u24 v5, 1152, v4
    v_lshrrev_b32 v6, 5, v2
    v_lshl_add_u32 v5, v6, 6, v5
    s_lshl_b32 s35, s26, 7
    s_waitcnt lgkmcnt(0)
    """)
    A.stamp(0)
    srd(A, SX, 4, 5, 2359296)
    srd(A, SWS, 8, 9, WS_USED)
    for g in range(18):
        A(f"s_mov_b32 m0, s33\n buffer_load_dwordx4 v3, {s(SWS,4)}, s32 offen lds\n s_add_u32 s33, s33, 4096\n s_add_u32 s32, s32, 4096")
        for k in range(2):
            st = 2*g + k
            A(f"buffer_load_dwordx4 {v(X+4*st,4)}, v3, {s(SWS,4)}, s31 offen offset:{(st&3)*1024}")
            if st & 3 == 3: A("s_add_u32 s31, s31, 4096")
    for a in range(4):
        A(f"buffer_load_dwordx4 {v(RES+4*a,4)}, v5, {s(SX,4)}, s35 offen offset:{16*a}")
    A(f"v_add_u32 v7, 36864, v3")
    NS = 3; KS = 12
    for stage in range(NS):
        A(f"s_waitcnt vmcnt({4 + 54 - 18*(stage+1)})\n s_barrier")
        A.stamp(1 + stage)
        def rd(st, t):
            f = st*2 + t
            return f"ds_read_b128 {v(WF+4*(f&7),4)}, v{3 if f < 36 else 7} offset:{(f%36)*1024}"
        seq = [(st, t) for st in range(stage*KS, (stage+1)*KS) for t in range(2)]
        for i in range(6): A(rd(*seq[i]))
        for i, (st, t) in enumerate(seq):
            rem = min(5, len(seq) - 1 - i)
            A(f"s_waitcnt lgkmcnt({rem})")
            f = st*2 + t
            c = v(ACC+16*t, 16) if st else "0"
            A(f"v_mfma_f32_32x32x16_bf16 {v(ACC+16*t,16)}, {v(WF+4*(f&7),4)}, {v(X+4*st,4)}, {c}")
            if i + 6 < len(seq): A(rd(*seq[i+6]))
    A(f"""
    s_waitcnt vmcnt(0)
    s_mov_b32 s38, 0x3f803f80
    s_mov_b32 s39, 0x00003f80
    s_mov_b32 s40, 0x3f800000
    s_lshl_b32 s36, s26, 12
    s_add_u32 s36, s36, s30
    s_add_u32 s36, s36, {HF_OFF}
    v_mov_b32 v{T}, 0
    v_mov_b32 v{T+1}, 0
    """)
    for a in range(4):
        for r in range(4):
            A(f"v_dot2_f32_bf16 v{ACC+8*r+a}, v{RES+4*a+r}, s39, v{ACC+8*r+a}")
            A(f"v_dot2_f32_bf16 v{ACC+8*r+4+a}, v{RES+4*a+r}, s40, v{ACC+8*r+4+a}")
    for a in range(4):
        for r in range(4): A(f"v_cvt_pk_bf16_f32 v{X+4*a+r}, v{ACC+8*r+a}, v{ACC+8*r+4+a}")
        A(f"buffer_store_dwordx4 {v(X+4*a,4)}, v3, {s(SWS,4)}, s36 offen offset:{1024*a}")
    for r in range(16): A(f"v_dot2c_f32_bf16 v{T+(r&1)}, s38, v{X+r}")
    A(f"""
    v_add_f32 v{T}, v{T}, v{T+1}
    v_mov_b32 v{T+1}, v{T}
    v_permlane32_swap_b32 v{T}, v{T+1}
    v_add_f32 v{T}, v{T}, v{T+1}
    v_mul_f32 v{T+2}, {hex(f2u(-1.0/64))}, v{T}
    v_mov_b32 v{T+1}, 0
    v_mov_b32 v{T+3}, 0
    """)
    for r in range(16):
        A(f"v_dot2_f32_bf16 v{ACC+2*r}, v{X+r}, s39, v{T+2}")
        A(f"v_dot2_f32_bf16 v{ACC+2*r+1}, v{X+r}, s40, v{T+2}")
    for r in range(16):
        A(f"v_fmac_f32 v{T+1}, v{ACC+2*r}, v{ACC+2*r}\n v_fmac_f32 v{T+3}, v{ACC+2*r+1}, v{ACC+2*r+1}")
    A(f"""
    v_add_f32 v{T+1}, v{T+1}, v{T+3}
    v_mov_b32 v{T+3}, v{T+1}
    v_permlane32_swap_b32 v{T+1}, v{T+3}
    v_add_f32 v{T+1}, v{T+1}, v{T+3}
    s_lshl_b32 s36, s26, 14
    s_add_u32 s36, s36, {ST_OFF}
    v_lshlrev_b32 v4, 3, v4
    buffer_store_dwordx2 {v(T,2)}, v4, {s(SWS,4)}, s36 offen
    """)
    A.flush(SWS)
    A("s_endpgm")
    A(f"""
    {name}_aux:
    s_waitcnt lgkmcnt(0)
    """)
    srd(A, SWS, 8, 9, WS_USED)
    A(f"""
    s_sub_u32 s24, s2, 144
    v_lshlrev_b32 v1, 4, v0
    v_mov_b32 v4, 0
    v_mov_b32 v5, 0
    v_mov_b32 v6, 0
    v_mov_b32 v7, 0
    s_lshl_b32 s25, s24, 12
    s_add_u32 s25, s25, {FLAG_OFF}
    s_cmp_lt_u32 s24, 2
    s_cbranch_scc0 {name}_aux2
    buffer_store_dwordx4 v[4:7], v1, {s(SWS,4)}, s25 offen
    {name}_aux2:
    s_bfe_u32 s25, s2, 0x20001
    s_mul_i32 s25, s25, {8*324*1024}
    s_add_u32 s25, s25, {WGU_OFF}
    s_add_u32 s{SX}, s8, s25
    s_addc_u32 s{SX+1}, s9, 0
    s_and_b32 s{SX+1}, s{SX+1}, 0xffff
    s_mov_b32 s{SX+2}, {8*324*1024}
    s_mov_b32 s{SX+3}, 0x20000
    s_lshr_b32 s24, s24, 3
    s_lshl_b32 s24, s24, 15
    v_lshlrev_b32 v1, 7, v0
    """)
    if PF:
        for i in range(6):
            A(f"buffer_load_dword v{8+i}, v1, {s(SX,4)}, s24 offen\n s_add_u32 s24, s24, {14*32768}")
    A(f"{name}_end:\n s_endpgm")
    body = A.finish()
    return (name, 256, 256, 73728), kernel_head(name) + body, kernel_desc(name, 256, 0, 64)
```

```python
from asmlib import *
from layout import *
from k1 import srd, VM

def gen_k4(name, HLA=8, RLA=3, WT="sc1", HPF=False, WDPF=False, WB=()):
    A = Asm(3); vm = VM(A)
    X = 112; ACC = 32; WF = 16; NWF = 4; NM = 8; RS = 9; SA = 10
    T = ACC + 64
    SWS, SW = 12, 16
    A(f"""
    s_cmp_ge_u32 s2, 256
    s_cbranch_scc1 {name}_end
    s_load_dwordx2 s[8:9], s[0:1], 72
    v_lshrrev_b32 v1, 6, v0
    v_and_b32 v2, 63, v0
    v_readfirstlane_b32 s24, v1
    s_bfe_u32 s25, s2, 0x20001
    s_lshl_b32 s25, s25, 3
    s_bfe_u32 s26, s2, 0x30003
    s_add_u32 s25, s25, s26
    s_and_b32 s26, s2, 1
    s_lshl_b32 s26, s26, 2
    s_lshr_b32 s27, s2, 6
    s_add_u32 s26, s26, s27
    s_lshl_b32 s26, s26, 3
    s_add_u32 s26, s26, s24
    v_lshlrev_b32 v3, 4, v2
    v_and_b32 v1, 31, v2
    s_lshl_b32 s27, s26, 5
    v_add_lshl_u32 v7, v1, s27, 3
    s_mul_i32 s28, s25, {324*1024}
    s_add_u32 s28, s28, {WGU_OFF}
    s_mul_i32 s31, s26, {36*1024}
    s_add_u32 s31, s31, {HF_OFF}
    s_lshl_b32 s32, s24, 10
    s_and_b32 s37, s24, 3
    s_mul_i32 s37, s37, 36
    s_lshr_b32 s38, s24, 2
    s_add_u32 s37, s37, s38
    s_lshl_b32 s37, s37, 10
    s_mov_b32 s33, {ST_OFF}
    s_waitcnt lgkmcnt(0)
    """)
    A.stamp(0)
    srd(A, SWS, 8, 9, WS_USED)
    if HPF:
        A(f"""
        s_and_b32 s42, s2, 1
        s_mul_i32 s42, s42, {4*288*1024}
        s_lshr_b32 s43, s2, 3
        s_lshl_b32 s43, s43, 3
        s_add_u32 s43, s43, s24
        s_mul_i32 s43, s43, {36*128}
        s_add_u32 s42, s42, s43
        s_add_u32 s42, s42, {HF_OFF}
        v_min_u32 v11, 35, v2
        v_lshlrev_b32 v11, 7, v11
        """)
        vm.issue(f"buffer_load_dword v12, v11, {s(SWS,4)}, s42 offen", "pf")
    for b in range(9):
        vm.issue(f"buffer_load_dwordx2 {v(ACC+2*b,2)}, v7, {s(SWS,4)}, s33 offen", "st")
        A("s_add_u32 s33, s33, 16384")
    A(f"""
    s_add_u32 s{SW}, s8, s28
    s_addc_u32 s{SW+1}, s9, 0
    s_and_b32 s{SW+1}, s{SW+1}, 0xffff
    s_mov_b32 s{SW+2}, {324*1024}
    s_mov_b32 s{SW+3}, 0x20000
    """)
    def dma(r, k):
        p = 16*r + 8*k
        if p >= 324: return
        if p < 144: src = f"s_add_u32 s34, s37, {(p//4)*1024}"
        else: src = f"s_add_u32 s34, s32, {p*1024}"
        A(f"s_add_u32 m0, s32, {(p%144)*1024}\n {src}")
        vm.issue(f"buffer_load_dwordx4 v3, {s(SW,4)}, s34 offen lds", ("R", r))
    def hload(st):
        if st >= 36: return
        vm.issue(f"buffer_load_dwordx4 {v(X+4*st,4)}, v3, {s(SWS,4)}, s31 offen offset:{(st&3)*1024}", ("h", st))
        if st & 3 == 3: A("s_add_u32 s31, s31, 4096")
    hload(0); dma(0, 0); dma(0, 1); hload(1)
    hn = 2
    A(f"""
    v_mov_b32 v4, v3
    v_add_u32 v5, 65536, v3
    v_add_u32 v6, 131072, v3
    v_lshrrev_b32 v{T}, 4, v1
    v_mul_u32_u24 v{T}, 147456, v{T}
    v_lshrrev_b32 v{T+1}, 5, v2
    v_lshl_add_u32 v{T}, v{T+1}, 8, v{T}
    v_and_b32 v{T+1}, 15, v2
    v_lshl_add_u32 v{SA}, v{T+1}, 4, v{T}
    s_mul_i32 s35, s26, 294912
    s_mul_i32 s36, s25, {9*512}
    s_add_u32 s35, s35, s36
    s_add_u32 s35, s35, {HH_OFF}
    s_add_u32 s36, s35, 4096
    s_mov_b32 s39, 0xffff0000
    """)
    vm.wait("st")
    A(f"v_add_f32 v{T}, v{ACC}, v{ACC+2}\n v_add_f32 v{T+1}, v{ACC+1}, v{ACC+3}")
    for b in range(2, 9): A(f"v_add_f32 v{T}, v{T}, v{ACC+2*b}\n v_add_f32 v{T+1}, v{T+1}, v{ACC+2*b+1}")
    A(f"v_mul_f32 v{NM}, {hex(f2u(-1.0/576))}, v{T}\n s_mov_b32 s41, {hex(f2u(1.0/64))}\n v_mov_b32 v{T+2}, 0")
    for b in range(9):
        A(f"v_fma_f32 v{T+3}, v{ACC+2*b}, s41, v{NM}\n v_fmac_f32 v{T+2}, v{T+3}, v{T+3}")
    A(f"""
    v_fmac_f32 v{T+1}, {hex(f2u(64.0))}, v{T+2}
    v_mov_b32 v{T+2}, {hex(f2u(1e-5))}
    v_fmac_f32 v{T+2}, {hex(f2u(1.0/576))}, v{T+1}
    v_rsq_f32 v{RS}, v{T+2}
    v_mul_f32 v{NM}, v{NM}, v{RS}
    """)
    def center(st):
        o = []
        for r in range(4):
            x = X + 4*st + r; t = T + 2*r
            o += [f"v_lshlrev_b32 v{t}, 16, v{x}", f"v_and_b32 v{t+1}, s39, v{x}",
                  f"v_fma_f32 v{t}, v{t}, v{RS}, v{NM}", f"v_fma_f32 v{t+1}, v{t+1}, v{RS}, v{NM}",
                  f"v_cvt_pk_bf16_f32 v{x}, v{t}, v{t+1}"]
        return o
    def epi(tl):
        b = ACC + 16*(tl % 5); o = []
        for qd in range(2):
            g = b + 8*qd; u = g + 4
            for r in range(4): o.append(f"v_max_f32 v{g+r}, 0, v{g+r}")
            for r in range(4): o.append(f"v_mul_f32 v{g+r}, v{g+r}, v{u+r}")
            for r in range(2): o.append(f"v_cvt_pk_bf16_f32 v{b+4+2*qd+r}, v{g+2*r}, v{g+2*r+1}")
        o.append(("st", f"buffer_store_dwordx4 {v(b+4,4)}, v{SA}, {s(SWS,4)}, {'s35' if tl < 8 else 's36'} offen offset:{(tl%8)*512} {WT}"))
        return o
    seq = [(st, t) for st in range(36) for t in range(4)] + [(st, t) for t in range(4, 9) for st in range(36)]
    def rd(i):
        q = i % 144
        return f"ds_read_b128 {v(WF+4*(i%NWF),4)}, v{4+(q>>6)} offset:{(q&63)*1024}"
    pend = []
    nextr = [1]
    def barrier(r):
        while pend and pend[0][0] <= r: dma(*pend.pop(0))
        vm.wait(("R", r)); A("s_barrier")
        lim = r + RLA if r < 7 else r + 7
        n = 0
        while nextr[0] <= lim and n < 2:
            pend.append((nextr[0], 0)); pend.append((nextr[0], 1)); nextr[0] += 1; n += 1
    hload(2); hload(3); hn = 4
    vm.wait(("h", 0))
    for l in center(0): A(l)
    barrier(0)
    for i in range(NWF): A(rd(i))
    fill = []
    for i, (st, t) in enumerate(seq):
        if i % 36 == 0: A.stamp(1 + i // 36)
        if i < 144 and t == 0 and st < 35:
            vm.wait(("h", st + 1)); fill = center(st + 1)
        if i == 144 + 1: fill = epi(0) + epi(1) + epi(2) + epi(3)
        if i > 144 + 36 and (i - 144) % 36 == 1: fill = epi(t - 1)
        A(f"s_waitcnt lgkmcnt({min(NWF-1, 323-i)})")
        acc = v(ACC + 16*(t % 5), 16)
        A(f"v_mfma_f32_32x32x16_bf16 {acc}, {v(WF+4*(i%NWF),4)}, {v(X+4*st,4)}, {acc if st else '0'}")
        n = i + NWF
        if n < 324:
            if n % 16 == 0: barrier(n // 16)
            A(rd(n))
        if i < 144 and (t == 1 or (t == 2 and hn < st + HLA)): hload(hn); hn += 1
        elif pend and (i % 4 == 3 or (i % 4 == 0 and i < 32)): dma(*pend.pop(0))
        if WDPF and i == 190:
            A(f"""
            s_lshr_b32 s43, s2, 3
            s_lshl_b32 s43, s43, 3
            s_add_u32 s43, s43, s24
            s_lshr_b32 s42, s43, 6
            s_lshl_b32 s42, s42, 2
            s_bfe_u32 s44, s2, 0x20001
            s_add_u32 s42, s42, s44
            s_mul_i32 s42, s42, {324*1024}
            s_and_b32 s43, s43, 63
            s_mul_i32 s43, s43, {41*128}
            s_add_u32 s42, s42, s43
            s_add_u32 s42, s42, {WD_OFF}
            v_min_u32 v11, 40, v2
            v_lshlrev_b32 v11, 7, v11
            """)
            vm.issue(f"buffer_load_dword v12, v11, {s(SWS,4)}, s42 offen", "pf")
        if i in WB:
            A(f"s_lshl_b32 s42, s2, 3\n s_add_u32 s42, s42, s24\n s_and_b32 s42, s42, 0x7c7\n s_cbranch_scc1 {name}_wb{i}\n buffer_wbl2 sc1\n {name}_wb{i}:")
        k = 5 if i < 144 else (3 if i < 180 else 1)
        for l in fill[:k]:
            if isinstance(l, tuple): vm.issue(l[1], "st")
            else: A(l)
        fill = fill[k:]
    assert not fill
    A.stamp(10)
    for l in epi(8):
        if isinstance(l, tuple): vm.issue(l[1], "st")
        else: A(l)
    A.flush(SWS)
    A(f"{name}_end:\n s_endpgm")
    body = A.finish()
    return (name, 256, 512, 147456), kernel_head(name) + body, kernel_desc(name, 256, 0, 64)
```

```python
from asmlib import *
from layout import *
from k1 import srd, VM

def gen_k5(name, HLA=3, RLA=2, NWF=6, PRE=2, ABL=(), SLEEP=1, ROT=(0, 0), PH=0, DENSE=6):
    A = Asm(4); vm = VM(A)
    HR = 16; NH = 6; WF = 64; ACC = 100
    RES = 172; PK = 192; IN = 16
    SWS, SW, SO = 12, 16, 20
    RS = 12; NR = 6
    A(f"""
    s_cmp_ge_u32 s2, 256
    s_cbranch_scc1 {name}_end
    s_load_dwordx2 s[8:9], s[0:1], 72
    s_load_dwordx2 s[4:5], s[0:1], 56
    v_lshrrev_b32 v1, 6, v0
    v_and_b32 v2, 63, v0
    v_readfirstlane_b32 s24, v1
    s_bfe_u32 s25, s2, 0x20001
    s_and_b32 s26, s2, 1
    s_lshl_b32 s26, s26, 3
    s_bfe_u32 s27, s2, 0x30003
    s_add_u32 s26, s26, s27
    s_lshr_b32 s27, s2, 6
    s_and_b32 s45, s24, 3
    s_lshr_b32 s46, s24, 2
    v_lshlrev_b32 v3, 4, v2
    s_mul_i32 s47, s46, 147456
    v_add_u32 v13, s47, v3
    s_sub_u32 s47, 147456, s47
    v_add_u32 v14, s47, v3
    s_lshl_b32 s28, s27, 2
    s_add_u32 s28, s28, s25
    s_lshl_b32 s28, s28, 1
    s_add_u32 s28, s28, s46
    s_mul_i32 s28, s28, {162*1024}
    s_add_u32 s28, s28, {WD_OFF}
    s_lshl_b32 s29, s26, 2
    s_add_u32 s29, s29, s45
    s_mul_i32 s31, s29, 294912
    s_lshl_b32 s30, s25, 1
    s_add_u32 s30, s30, s46
    s_mul_i32 s30, s30, {18*1024}
    s_add_u32 s31, s31, s30
    s_add_u32 s31, s31, {HH_OFF}
    s_lshl_b32 s32, s45, 10
    s_mul_i32 s33, s46, {72*1024}
    v_add_u32 v5, s33, v3
    v_add_u32 v6, {36*1024}, v5
    s_add_u32 s33, s33, s32
    s_waitcnt lgkmcnt(0)
    """)
    A.stamp(0)
    srd(A, SWS, 8, 9, WS_USED)
    A(f"""
    s_add_u32 s{SW}, s8, s28
    s_addc_u32 s{SW+1}, s9, 0
    s_and_b32 s{SW+1}, s{SW+1}, 0xffff
    s_mov_b32 s{SW+2}, {162*1024}
    s_mov_b32 s{SW+3}, 0x20000
    """)
    A(f"""
    s_mul_i32 s61, s27, {ROT[0]}
    s_and_b32 s62, s26, 7
    s_mul_i32 s62, s62, {ROT[1]}
    s_add_u32 s61, s61, s62
    s_lshr_b32 s61, s61, 1
    s_cmp_ge_u32 s61, 18
    s_cselect_b32 s62, 18, 0
    s_sub_u32 s61, s61, s62
    s_cmp_ge_u32 s61, 18
    s_cselect_b32 s62, 18, 0
    s_sub_u32 s61, s61, s62
    s_mul_i32 s62, s61, 9216
    s_add_u32 s32, s32, s62
    s_add_u32 s63, s31, {18*1024}
    s_lshl_b32 s61, s61, 10
    s_add_u32 s31, s31, s61
    """)
    def dma(r, k):
        p = RS*r + 4*k
        if p >= 162: return
        A(f"s_add_u32 s34, s32, {p*1024}\n s_cmp_ge_u32 s34, {162*1024}\n s_cselect_b32 s35, {162*1024}, 0\n s_sub_u32 s34, s34, s35\n s_add_u32 m0, s33, {(p % (RS*NR))*1024}")
        vm.issue(f"buffer_load_dwordx4 v3, {s(SW,4)}, s34 offen lds", ("R", r))
    def hload(st, n2):
        if st >= 18: return
        vm.issue(f"buffer_load_dwordx4 {v(HR+8*(st%NH)+4*n2,4)}, v{13+n2}, {s(SWS,4)}, s31 offen", ("h", st))
        if n2 == 1: A(f"s_add_u32 s31, s31, 1024\n s_cmp_ge_u32 s31, s63\n s_cselect_b32 s35, {18*1024}, 0\n s_sub_u32 s31, s31, s35")
    hload(0, 0); hload(0, 1)
    for k in range(3): dma(0, k)
    hq = [(st, n2) for st in range(1, 18) for n2 in range(2)]
    for r in range(1, PRE):
        hload(*hq.pop(0)); hload(*hq.pop(0))
        for k in range(3): dma(r, k)
    for _ in range(2*PH): hload(*hq.pop(0))
    def rd(i):
        q = i % (RS*NR)
        return f"ds_read_b128 {v(WF+4*(i%NWF),4)}, v{5 + q//36} offset:{(q%36)*1024}"
    pend = []; nextr = [PRE]
    def barrier(r):
        while pend and pend[0][0] <= r: dma(*pend.pop(0))
        vm.wait(("R", r)); A("s_barrier")
        while nextr[0] <= r + RLA:
            for k in range(3): pend.append((nextr[0], k))
            nextr[0] += 1
    barrier(0)
    for i in range(NWF): A(rd(i))
    A.stamp(1)
    for i in range(162):
        st, t = divmod(i, 9)
        if t == 0:
            while hq and hq[0][0] <= st: hload(*hq.pop(0))
            vm.wait(("h", st))
        A(f"s_waitcnt lgkmcnt({min(NWF-1, 161-i)})")
        for n2 in range(2):
            acc = v(ACC + (2*t + n2)*4, 4)
            A(f"v_mfma_f32_16x16x32_bf16 {acc}, {v(WF+4*(i%NWF),4)}, {v(HR+8*(st%NH)+4*n2,4)}, {acc if st else '0'}")
        n = i + NWF
        if n < 162:
            if n % RS == 0: barrier(n // RS)
            A(rd(n))
        if (t in (1, 5) or (st < DENSE and t in (2, 6))) and hq and hq[0][0] <= st + HLA: hload(*hq.pop(0))
        elif pend and (t in (0, 3, 7) or (st < DENSE and t in (4, 8))): dma(*pend.pop(0))
        if i == 120:
            A(f"""
            v_and_b32 v7, 15, v2
            v_lshrrev_b32 v8, 4, v2
            s_lshl_b32 s47, s46, 4
            v_add_u32 v7, s47, v7
            v_lshrrev_b32 v9, 1, v8
            v_and_b32 v10, 1, v8
            v_lshlrev_b32 v11, 12, v9
            v_lshl_add_u32 v11, v10, 9, v11
            v_lshl_add_u32 v11, v7, 4, v11
            v_lshlrev_b32 v12, 10, v9
            v_lshl_add_u32 v12, v7, 4, v12
            v_lshl_add_u32 v12, v10, 3, v12
            s_mul_i32 s49, s29, 36
            s_lshl_b32 s50, s27, 3
            s_add_u32 s50, s50, s49
            s_lshl_b32 s50, s50, 10
            s_add_u32 s50, s50, {HF_OFF}
            s_and_b32 s51, s27, 1
            s_lshl_b32 s51, s51, 1
            s_add_u32 s51, s51, s49
            s_add_u32 s51, s51, 32
            s_lshl_b32 s51, s51, 10
            s_lshr_b32 s52, s27, 1
            s_lshl_b32 s52, s52, 9
            s_add_u32 s51, s51, s52
            s_add_u32 s51, s51, {HF_OFF}
            s_cmp_eq_u32 s45, s25
            s_cselect_b32 s50, s50, 0x7ff00000
            s_cselect_b32 s51, s51, 0x7ff00000
            """)
            for r in range(4): vm.issue(f"buffer_load_dwordx4 {v(RES+4*r,4)}, v11, {s(SWS,4)}, s50 offen offset:{1024*r}", "res")
            vm.issue(f"buffer_load_dwordx2 {v(RES+16,2)}, v12, {s(SWS,4)}, s51 offen", "res")
    A.stamp(2)
    A(f"""
    s_mul_i32 s34, s45, 9216
    s_add_u32 s34, s34, {24*1024}
    s_mul_i32 s35, s46, {72*1024}
    s_add_u32 s36, s34, s35
    s_sub_u32 s35, {72*1024}, s35
    s_add_u32 s35, s35, s34
    v_add_u32 v13, s36, v3
    v_add_u32 v14, s35, v3
    """)
    for t in range(9): A(f"ds_write_b128 v13, {v(ACC+8*t+4,4)} offset:{t*1024}")
    A(f"s_waitcnt lgkmcnt(0)\n s_barrier")
    for t in range(9): A(f"ds_read_b128 {v(ACC+8*t+4,4)}, v14 offset:{t*1024}")
    A(f"""
    s_lshl_b32 s39, s26, 2
    s_add_u32 s39, s39, s27
    s_lshl_b32 s38, s39, 2
    s_add_u32 s38, s38, s45
    s_lshl_b32 s38, s38, 3
    s_add_u32 s38, s38, s46
    s_mul_i32 s38, s38, 5120
    s_add_u32 s38, s38, {PART_OFF}
    s_mul_i32 s36, s25, 10240
    s_add_u32 s36, s36, s38
    s_add_u32 s37, s36, 4096
    s_lshl_b32 s55, s39, 7
    s_add_u32 s55, s55, {FLAG_OFF}
    s_lshl_b32 s56, s25, 2
    s_add_u32 s56, s56, s55
    v_mov_b32 v15, 1
    v_mov_b32 v14, 0
    v_lshlrev_b32 v13, 3, v2
    """)
    for t in range(9):
        A(f"s_waitcnt lgkmcnt({8-t})")
        for r in range(4): A(f"v_add_f32 v{ACC+8*t+r}, v{ACC+8*t+r}, v{ACC+8*t+4+r}")
    pairs = [(16*d + r, 16*d + 8 + r) for r in range(4) for d in range(4)] + [(64, 65), (66, 67)]
    A.stamp(5)
    A(f"s_cmp_eq_u32 s45, s25\n s_cbranch_scc1 {name}_own")
    for i, (lo, hi) in enumerate(pairs):
        A(f"v_cvt_pk_bf16_f32 v{PK+i}, v{ACC+lo}, v{ACC+hi}")
        if i % 4 == 3: A(f"buffer_store_dwordx4 {v(PK+i-3,4)}, v3, {s(SWS,4)}, s36 offen offset:{256*(i-3)} sc1")
    A(f"buffer_store_dwordx4 {v(PK+16,4)}, v3, {s(SWS,4)}, s37 offen sc1")
    A.stamp(6)
    A(f"s_branch {name}_fl")
    A(f"{name}_own:")
    srd(A, SO, 4, 5, 2359296)
    A(f"""
    s_mov_b32 s59, 0x00003f80
    s_mov_b32 s60, 0x3f800000
    s_lshl_b32 s50, s29, 5
    v_add_u32 v7, s50, v7
    v_mul_u32_u24 v7, 1152, v7
    v_lshl_add_u32 v10, v8, 6, v7
    v_lshl_add_u32 v11, v8, 3, v7
    s_lshl_b32 s52, s27, 8
    s_lshl_b32 s53, s27, 5
    s_waitcnt vmcnt(0)
    """)
    def addpk(src):
        for i, (lo, hi) in enumerate(pairs):
            A(f"v_dot2_f32_bf16 v{ACC+lo}, v{src+i}, s59, v{ACC+lo}\n v_dot2_f32_bf16 v{ACC+hi}, v{src+i}, s60, v{ACC+hi}")
    addpk(RES)
    A.stamp(8)
    for d in range(1, 4):
        A(f"s_xor_b32 s{40+2*d}, s25, {d}\n s_mul_i32 s{40+2*d}, s{40+2*d}, 10240\n s_add_u32 s{40+2*d}, s{40+2*d}, s38\n s_add_u32 s{41+2*d}, s{40+2*d}, 4096")
    def ldp(d):
        for r in range(4): A(f"buffer_load_dwordx4 {v(IN+20*(d-1)+4*r,4)}, v3, {s(SWS,4)}, s{40+2*d} offen offset:{1024*r} sc1")
        A(f"buffer_load_dwordx4 {v(IN+20*(d-1)+16,4)}, v3, {s(SWS,4)}, s{41+2*d} offen sc1")
    A(f"""
    s_mov_b32 s57, 0
    v_min_u32 v14, 2, v2
    v_add_u32 v14, 1, v14
    v_xor_b32 v14, s25, v14
    v_mul_u32_u24 v14, 10240, v14
    s_add_u32 s58, s38, {4096 + 63*16}
    {name}_lp:
    s_sleep {SLEEP}
    buffer_load_dword v15, v14, {s(SWS,4)}, s58 offen sc1
    s_add_u32 s57, s57, 1
    s_waitcnt vmcnt(0)
    v_cmp_eq_u32 vcc, -1, v15
    s_cmp_gt_u32 s57, 0x40000
    s_cbranch_scc1 {name}_lp2
    s_cbranch_vccnz {name}_lp
    {name}_lp2:
    """)
    A.stamp(3)
    for d in range(1, 4): ldp(d)
    for d in range(1, 4):
        b = IN + 20*(d-1)
        A(f"s_waitcnt vmcnt({5*(3-d)})\n {name}_chk{d}:")
        A(f"v_max3_u32 v15, v{b}, v{b+1}, v{b+2}")
        for r in range(3, 17, 2): A(f"v_max3_u32 v15, v15, v{b+r}, v{b+r+1}")
        A(f"""
        v_max_u32 v15, v15, v{b+17}
        v_cmp_eq_u32 vcc, -1, v15
        s_add_u32 s57, s57, 1
        s_cbranch_vccz {name}_ok{d}
        s_cmp_gt_u32 s57, 0x40000
        s_cbranch_scc1 {name}_ok{d}
        """)
        ldp(d)
        A(f"s_waitcnt vmcnt(0)\n s_branch {name}_chk{d}\n {name}_ok{d}:")
        addpk(b)
    A.stamp(4)
    for i, (lo, hi) in enumerate(pairs): A(f"v_cvt_pk_bf16_f32 v{PK+i}, v{ACC+lo}, v{ACC+hi}")
    for r in range(4): A(f"buffer_store_dwordx4 {v(PK+4*r,4)}, v10, {s(SO,4)}, s52 offen offset:{16*r}")
    A(f"buffer_store_dwordx2 {v(PK+16,2)}, v11, {s(SO,4)}, s53 offen offset:1024")
    A.stamp(9)
    A(f"{name}_fl:")
    A.flush(SWS)
    A(f"{name}_end:\n s_endpgm")
    def drop(l):
        if "MFMA" in ABL and l.startswith("v_mfma"): return True
        if "LDS" in ABL and l.startswith("ds_read") and "v14" not in l: return True
        if "H" in ABL and l.startswith("buffer_load_dwordx4") and "s31" in l: return True
        if "W" in ABL and l.endswith(" lds"): return True
        return False
    A.lines = [l for l in A.lines if not drop(l)]
    body = A.finish()
    return (name, 256, 512, 147456), kernel_head(name) + body, kernel_desc(name, 216, 0, 64)
```

```python
import sys
import asmlib
asmlib.DIAG = 'diag' in sys.argv
from k1 import gen_k1
from k2 import gen_k2
from k3 import gen_k3
from k4 import gen_k4
from k5 import gen_k5
NAME = "sequential_preLN__softmax_full_mha__glu_gated_reglu__prompt"
def build(force_fallback=False, **kw):
    ks = [gen_k1("qkv_kernel", **kw.get("k1", {})), gen_k2("attn_kernel", force_fallback, **kw.get("k2", {})), gen_k3("wo_kernel", **kw.get("k3", {})), gen_k4("ffn1_kernel", **kw.get("k4", {})), gen_k5("ffn2_kernel", **kw.get("k5", {}))]
    hdr = open(f"cdna_kernels/{NAME}.s.ref").read().split("; Override launch")[0]
    out = hdr
    for (n, g, b, l), _, _ in ks:
        out += f"; @launch kernel={n} grid=({g},1,1) block=({b},1,1) lds={l}\n"
    out += '.amdgcn_target "amdgcn-amd-amdhsa--gfx950"\n'
    for _, code, _ in ks: out += code
    for _, _, d in ks: out += d
    return out
if __name__ == "__main__":
    path = sys.argv[1] if len(sys.argv) > 1 else f"cdna_kernels/{NAME}.s"
    kw = {}
    for a in sys.argv[2:]:
        if a.startswith("{"): kw = eval(a)
    open(path, "w").write(build("ff" in sys.argv[2:], **kw))
```
